```python
import torch

def _softmax(x, axis=-1):
    return torch.softmax(x, dim=axis)
def _gelu(x):
    return torch.nn.functional.gelu(x, approximate="tanh")
def _silu(x):
    return torch.nn.functional.silu(x)
def _sigmoid(x):
    return torch.sigmoid(x)
def _layernorm(x, axis=-1, eps=1e-5):
    m = x.mean(dim=axis, keepdim=True)
    v = x.var(dim=axis, keepdim=True, unbiased=False)
    return (x - m) / torch.sqrt(v + eps)
def _scatter_add(tgt, idx, src, axis=0):
    return tgt.clone().index_add_(axis, idx, src)
def _segment_sum(src, seg, n):
    out = torch.zeros((n,) + src.shape[1:], dtype=src.dtype)
    return out.index_add_(0, seg, src)
def _pad(x, pw):
    flat = tuple(v for pair in reversed(pw) for v in pair)
    return torch.nn.functional.pad(x, flat)

kernel_name = 'standalone__detection_seg_fpn_lateral__vision'

def setup_inputs():

    _w = (lambda a: (lambda t: t.to(torch.bfloat16) if t.is_floating_point() else t)(torch.as_tensor(a)))
    H = W = (512 // 2) * 2
    C = 96
    k = 1
    return {
        "c_fine": _w((lambda *s: torch.randn(*s, dtype=torch.bfloat16) * 0.05)(1, H, W, C)),
        "p_coarse": _w((lambda *s: torch.randn(*s, dtype=torch.bfloat16) * 0.05)(1, H // 2, W // 2, C)),
        "w_lat": _w((lambda *s: torch.randn(*s, dtype=torch.bfloat16) * 0.05)(C, C)),
        "w_out": _w((lambda *s: torch.randn(*s, dtype=torch.bfloat16) * 0.05)(k, k, C, C)),
    }

def reference(c_fine, p_coarse, w_lat, w_out):
    B, H, W, C = c_fine.shape
    k = 1
    lat = torch.einsum("bhwc,cd->bhwd", c_fine, w_lat)
    up = (lambda x, n, axis: torch.repeat_interleave(x, n, dim=axis))((lambda x, n, axis: torch.repeat_interleave(x, n, dim=axis))(p_coarse, 2, axis=1), 2, axis=2)
    m = lat + up
    pad = k // 2
    mp = _pad(m, ((0, 0), (pad, pad), (pad, pad), (0, 0)))
    o = None
    for di in range(k):
        for dj in range(k):
            t = torch.einsum("bhwc,cd->bhwd", mp[:, di:di + H, dj:dj + W, :], w_out[di, dj])
            o = t if o is None else o + t
    return o
```

```python
import sys, argparse

NAME = "standalone__detection_seg_fpn_lateral__vision"
HEADER = open("cdna_kernels/%s.s.ref" % NAME).read().split("; Override launch")[0]

C_BYTES = 50331648
P_BYTES = 12582912
W_BYTES = 18432


def gen(ld_flags="", st_flags="", swz=True, nslot=3):
    L = []
    e = L.append
    RING = 6144 + nslot * 3072
    WB = 8 * RING
    STG = 3328
    LDS = WB + 2 * W_BYTES
    assert LDS <= 163840

    vA1, vA2 = 0 + 112, 72 + 112
    vLane16 = 1
    vSw1, vSw2 = 2, 3
    vBrd = 4
    vPrd = 5
    vSwr = 6
    vSrd = 7
    vWrd = 10
    vT = 11
    vB = 12
    vPF = 24
    vAcc = 48
    vAcc2 = 72
    vO = 96

    e("%s_kernel:" % NAME)
    e("    s_cmp_ge_u32 s2, 256")
    e("    s_cbranch_scc1 L_end")
    e("    s_load_dwordx8 s[4:11], s[0:1], 0")
    e("    s_load_dwordx2 s[12:13], s[0:1], 32")
    e("    v_readfirstlane_b32 s14, v0")
    e("    v_and_b32 v0, 63, v0")
    e("    v_lshlrev_b32 v%d, 4, v0" % vLane16)
    e("    s_lshr_b32 s14, s14, 6")
    e("    s_mul_i32 s15, s2, 196608")
    e("    s_mul_i32 s3, s14, 12288")
    e("    s_add_u32 s15, s15, s3")
    e("    s_mul_i32 s32, s2, 49152")
    e("    s_mul_i32 s3, s14, 6144")
    e("    s_add_u32 s32, s32, s3")
    e("    s_mul_i32 s33, s14, %d" % RING)
    e("    s_and_b32 s34, s14, 3")
    e("    s_mul_i32 s34, s34, 4608")
    e("    s_mul_i32 s35, s14, 4608")
    e("    s_add_u32 s35, s35, %d" % WB)
    e("    s_mov_b32 s18, %d" % C_BYTES)
    e("    s_mov_b32 s19, 0x20000")
    e("    s_mov_b32 s22, %d" % P_BYTES)
    e("    s_mov_b32 s23, 0x20000")
    e("    s_mov_b32 s26, %d" % W_BYTES)
    e("    s_mov_b32 s27, 0x20000")
    e("    s_mov_b32 s30, %d" % C_BYTES)
    e("    s_mov_b32 s31, 0x20000")
    if swz:
        e("    v_xor_b32 v%d, 32, v%d" % (vSw2, vLane16))
        e("    v_and_b32 v%d, 32, v0" % vSw1)
        e("    v_xor_b32 v%d, v%d, v%d" % (vSw1, vSw1, vLane16))
    else:
        e("    v_mov_b32 v%d, v%d" % (vSw1, vLane16))
        e("    v_mov_b32 v%d, v%d" % (vSw2, vLane16))
    e("    s_mov_b32 m0, s35")
    e("    s_cmp_lt_u32 s14, 4")
    e("    s_waitcnt lgkmcnt(0)")
    e("    s_cselect_b32 s24, s8, s10")
    e("    s_cselect_b32 s25, s9, s11")
    e("    s_mov_b32 s16, s4")
    e("    s_mov_b32 s17, s5")
    e("    s_mov_b32 s20, s6")
    e("    s_mov_b32 s21, s7")
    e("    s_mov_b32 s28, s12")
    e("    s_mov_b32 s29, s13")

    vm = []

    def wait_for(tag):
        last = max(i for i, t in enumerate(vm) if t == tag)
        n = len(vm) - 1 - last
        e("    s_waitcnt vmcnt(%d)" % n)

    for t in range(4):
        e("    buffer_load_dwordx4 v%d, s[24:27], s34 offen offset:%d lds" % (vLane16, 1024 * t))
        vm.append("w")
    e("    s_add_u32 s34, s34, 4096")
    e("    s_add_u32 s35, s35, 4096")
    e("    s_mov_b32 m0, s35")
    e("    s_mov_b32 exec_hi, 0")
    e("    buffer_load_dwordx4 v%d, s[24:27], s34 offen lds" % vLane16)
    vm.append("w")
    e("    s_mov_b32 exec_hi, -1")

    def dma_p(half):
        e("    s_add_u32 s36, s33, %d" % (3072 * half))
        e("    s_mov_b32 m0, s36")
        e("    s_add_u32 s37, s32, %d" % (3072 * half))
        for t in range(3):
            e("    buffer_load_dwordx4 v%d, s[20:23], s37 offen offset:%d %s lds" % (vLane16, 1024 * t, ld_flags))
            vm.append("p%d" % half)

    def coff(n):
        return (n & 1) * 98304 + (n >> 1) * 3072

    def dma_c(n):
        e("    s_add_u32 s36, s33, %d" % (6144 + 3072 * (n % nslot)))
        e("    s_mov_b32 m0, s36")
        e("    s_add_u32 s37, s15, %d" % coff(n))
        for t, v in enumerate((vLane16, vSw1, vSw2)):
            e("    buffer_load_dwordx4 v%d, s[16:19], s37 offen offset:%d %s lds" % (v, 1024 * t, ld_flags))
            vm.append("c%d" % n)

    dma_p(0)
    dma_c(0)
    dma_c(1)
    dma_p(1)
    for n in range(2, nslot):
        dma_c(n)

    e("    v_and_b32 v%d, 15, v0" % vT)
    e("    v_lshrrev_b32 v%d, 4, v0" % vWrd)
    e("    v_mul_u32_u24 v%d, 192, v%d" % (vBrd, vT))
    if swz:
        e("    v_lshrrev_b32 v%d, 2, v%d" % (vPrd, vT))
        e("    v_and_b32 v%d, 2, v%d" % (vPrd, vPrd))
        e("    v_xor_b32 v%d, v%d, v%d" % (vPrd, vPrd, vWrd))
        e("    v_lshl_add_u32 v%d, v%d, 4, v%d" % (vBrd, vPrd, vBrd))
    else:
        e("    v_lshl_add_u32 v%d, v%d, 4, v%d" % (vBrd, vWrd, vBrd))
    e("    v_add_u32 v%d, s33, v%d" % (vBrd, vBrd))
    e("    v_lshrrev_b32 v%d, 1, v%d" % (vPrd, vT))
    e("    v_mul_u32_u24 v%d, 192, v%d" % (vPrd, vPrd))
    e("    v_lshl_add_u32 v%d, v%d, 4, v%d" % (vPrd, vWrd, vPrd))
    e("    v_add_u32 v%d, s33, v%d" % (vPrd, vPrd))
    e("    s_mul_i32 s38, s14, %d" % STG)
    e("    s_add_u32 s38, s38, %d" % WB)
    e("    v_mul_u32_u24 v%d, 208, v%d" % (vSwr, vT))
    e("    v_lshl_add_u32 v%d, v%d, 4, v%d" % (vSwr, vWrd, vSwr))
    e("    v_add_u32 v%d, s38, v%d" % (vSwr, vSwr))
    for t in range(3):
        r = vSrd + t
        e("    v_add_u32 v%d, %d, v0" % (r, 64 * t))
        e("    v_mul_u32_u24 v%d, 5462, v%d" % (vB, r))
        e("    v_lshrrev_b32 v%d, 16, v%d" % (vB, vB))
        e("    v_add_u32 v%d, v%d, v%d" % (r, r, vB))
        e("    v_lshl_add_u32 v%d, v%d, 4, s38" % (r, r))
    e("    v_lshrrev_b32 v%d, 2, v%d" % (vB, vT))
    e("    v_lshl_add_u32 v%d, v%d, 3, v%d" % (vWrd, vWrd, vB))
    e("    v_mul_u32_u24 v%d, 192, v%d" % (vWrd, vWrd))
    e("    v_and_b32 v%d, 3, v%d" % (vT, vT))
    e("    v_lshl_add_u32 v%d, v%d, 4, v%d" % (vWrd, vT, vWrd))
    e("    v_add_u32 v%d, %d, v%d" % (vWrd, WB, vWrd))

    wait_for("w")
    e("    s_barrier")
    for X, base in ((0, vA1), (1, vA2)):
        for mt in range(6):
            for s in range(3):
                for hh in range(2):
                    r = base + (mt * 3 + s) * 4 + 2 * hh
                    off = X * W_BYTES + (32 * s + 4 * hh) * 192 + 64 * (mt >> 1) + 8 * (mt & 1)
                    e("    ds_read_b64_tr_b16 v[%d:%d], v%d offset:%d" % (r, r + 1, vWrd, off))
    e("    s_waitcnt lgkmcnt(0)")
    e("    s_barrier")

    def A(base, mt, s):
        r = base + (mt * 3 + s) * 4
        return "v[%d:%d]" % (r, r + 3)

    def q(r):
        return "v[%d:%d]" % (r, r + 3)

    for n in range(8):
        it, di = n >> 1, n & 1
        if di == 0:
            wait_for("p%d" % (it >> 1)) if vm.index("p%d" % (it >> 1)) > vm.index("c%d" % n) else None
        wait_for("c%d" % n)
        if di == 0:
            for s in range(3):
                e("    ds_read_b128 %s, v%d offset:%d" % (q(vO + 4 * s), vPrd, it * 1536 + 64 * s))
        for s in range(3):
            e("    ds_read_b128 %s, v%d offset:%d" % (q(vB + 4 * s), vBrd, 6144 + 3072 * (n % nslot) + 64 * s))
        if di == 0:
            e("    s_waitcnt lgkmcnt(3)")
            for i in range(12):
                e("    v_lshlrev_b32 v%d, 16, v%d" % (vPF + 2 * i, vO + i))
                e("    v_and_b32 v%d, 0xffff0000, v%d" % (vPF + 2 * i + 1, vO + i))
        e("    s_waitcnt lgkmcnt(0)")
        if n + nslot < 8:
            dma_c(n + nslot)
        else:
            e("    s_nop 1")
        for mt in range(6):
            for s in range(3):
                c = q(vPF + 4 * mt) if s == 0 else q(vAcc + 4 * mt)
                e("    v_mfma_f32_16x16x32_bf16 %s, %s, %s, %s" % (q(vAcc + 4 * mt), A(vA1, mt, s), q(vB + 4 * s), c))
        for i in range(8):
            e("    v_cvt_pk_bf16_f32 v%d, v%d, v%d" % (vB + i, vAcc + 2 * i, vAcc + 2 * i + 1))
        for i in range(8, 12):
            e("    v_cvt_pk_bf16_f32 v%d, v%d, v%d" % (vB + i, vAcc + 2 * i, vAcc + 2 * i + 1))
        e("    s_nop 1")
        for mt in range(6):
            for s in range(3):
                c = "0" if s == 0 else q(vAcc2 + 4 * mt)
                e("    v_mfma_f32_16x16x32_bf16 %s, %s, %s, %s" % (q(vAcc2 + 4 * mt), A(vA2, mt, s), q(vB + 4 * s), c))
        for i in range(12):
            e("    v_cvt_pk_bf16_f32 v%d, v%d, v%d" % (vO + i, vAcc2 + 2 * i, vAcc2 + 2 * i + 1))
            if i % 4 == 3:
                e("    ds_write_b128 v%d, %s offset:%d" % (vSwr, q(vO + i - 3), 64 * (i >> 2)))
        for t in range(3):
            e("    ds_read_b128 %s, v%d" % (q(vAcc + 4 * t), vSrd + t))
        e("    s_add_u32 s37, s15, %d" % coff(n))
        for t in range(3):
            e("    s_waitcnt lgkmcnt(%d)" % (2 - t))
            e("    buffer_store_dwordx4 %s, v%d, s[28:31], s37 offen offset:%d %s" % (q(vAcc + 4 * t), vLane16, 1024 * t, st_flags))
            vm.append("o%d" % n)
    e("L_end:")
    e("    s_endpgm")

    out = HEADER
    out += "; @launch grid=(256,1,1) block=(512,1,1) lds=%d\n" % LDS
    out += '.amdgcn_target "amdgcn-amd-amdhsa--gfx950"\n.text\n.globl %s_kernel\n.p2align 8\n.type %s_kernel,@function\n' % (NAME, NAME)
    out += "\n".join(L) + "\n"
    out += """.section .rodata,"a"
.p2align 6
.amdhsa_kernel %s_kernel
  .amdhsa_next_free_vgpr 256
  .amdhsa_next_free_sgpr 48
  .amdhsa_accum_offset 256
  .amdhsa_group_segment_fixed_size 0
  .amdhsa_kernarg_size 56
  .amdhsa_user_sgpr_count 2
  .amdhsa_user_sgpr_kernarg_segment_ptr 1
  .amdhsa_system_sgpr_workgroup_id_x 1
.end_amdhsa_kernel
""" % NAME
    return out


if __name__ == "__main__":
    ap = argparse.ArgumentParser()
    ap.add_argument("-o", default="cdna_kernels/%s.s" % NAME)
    ap.add_argument("--ld", default="")
    ap.add_argument("--st", default="")
    ap.add_argument("--noswz", action="store_true")
    a = ap.parse_args()
    open(a.o, "w").write(gen(a.ld, a.st, not a.noswz))
```

```python
import sys, argparse

NAME = "standalone__detection_seg_fpn_lateral__vision"
HEADER = open("cdna_kernels/%s.s.ref" % NAME).read().split("; Override launch")[0]

C_BYTES = 50331648
P_BYTES = 12582912
W_BYTES = 18432


def gen(ld_flags="", st_flags="", swz=True, nslot=3, stamp=False):
    L = []
    e = L.append

    def st(i):
        if stamp:
            e("    s_memrealtime s[%d:%d]" % (48 + 2 * i, 49 + 2 * i))
            e("    s_waitcnt lgkmcnt(0)")
    RING = 6144 + nslot * 3072
    WB = 8 * RING
    STG = 3328
    LDS = WB + 2 * W_BYTES
    assert LDS <= 163840

    vA1, vA2 = 0 + 112, 72 + 112
    vLane16 = 1
    vSw1, vSw2 = 2, 3
    vBrd = 4
    vPrd = 5
    vSwr = 6
    vSrd = 7
    vWrd = 10
    vT = 11
    vB = 12
    vPF = 24
    vAcc = 48
    vAcc2 = 72
    vO = 96

    e("%s_kernel:" % NAME)
    e("    s_cmp_ge_u32 s2, 256")
    e("    s_cbranch_scc1 L_end")
    if stamp:
        e("    s_memrealtime s[48:49]")
        e("    s_load_dwordx2 s[64:65], s[0:1], 48")
    e("    s_load_dwordx8 s[4:11], s[0:1], 0")
    e("    s_load_dwordx2 s[12:13], s[0:1], 32")
    e("    v_readfirstlane_b32 s14, v0")
    e("    v_and_b32 v0, 63, v0")
    e("    v_lshlrev_b32 v%d, 4, v0" % vLane16)
    e("    s_lshr_b32 s14, s14, 6")
    e("    s_mul_i32 s15, s2, 196608")
    e("    s_mul_i32 s3, s14, 12288")
    e("    s_add_u32 s15, s15, s3")
    e("    s_mul_i32 s32, s2, 49152")
    e("    s_mul_i32 s3, s14, 6144")
    e("    s_add_u32 s32, s32, s3")
    e("    s_mul_i32 s33, s14, %d" % RING)
    e("    s_and_b32 s34, s14, 3")
    e("    s_mul_i32 s34, s34, 4608")
    e("    s_mul_i32 s35, s14, 4608")
    e("    s_add_u32 s35, s35, %d" % WB)
    e("    s_mov_b32 s18, %d" % C_BYTES)
    e("    s_mov_b32 s19, 0x20000")
    e("    s_mov_b32 s22, %d" % P_BYTES)
    e("    s_mov_b32 s23, 0x20000")
    e("    s_mov_b32 s26, %d" % W_BYTES)
    e("    s_mov_b32 s27, 0x20000")
    e("    s_mov_b32 s30, %d" % C_BYTES)
    e("    s_mov_b32 s31, 0x20000")
    if swz:
        e("    v_xor_b32 v%d, 32, v%d" % (vSw2, vLane16))
        e("    v_and_b32 v%d, 32, v0" % vSw1)
        e("    v_xor_b32 v%d, v%d, v%d" % (vSw1, vSw1, vLane16))
    else:
        e("    v_mov_b32 v%d, v%d" % (vSw1, vLane16))
        e("    v_mov_b32 v%d, v%d" % (vSw2, vLane16))
    e("    s_mov_b32 m0, s35")
    e("    s_cmp_lt_u32 s14, 4")
    e("    s_waitcnt lgkmcnt(0)")
    e("    s_cselect_b32 s24, s8, s10")
    e("    s_cselect_b32 s25, s9, s11")
    e("    s_mov_b32 s16, s4")
    e("    s_mov_b32 s17, s5")
    e("    s_mov_b32 s20, s6")
    e("    s_mov_b32 s21, s7")
    e("    s_mov_b32 s28, s12")
    e("    s_mov_b32 s29, s13")
    st(1)

    vm = []

    def wait_for(tag):
        last = max(i for i, t in enumerate(vm) if t == tag)
        n = len(vm) - 1 - last
        e("    s_waitcnt vmcnt(%d)" % n)

    for t in range(4):
        e("    buffer_load_dwordx4 v%d, s[24:27], s34 offen offset:%d lds" % (vLane16, 1024 * t))
        vm.append("w")
    e("    s_add_u32 s34, s34, 4096")
    e("    s_add_u32 s35, s35, 4096")
    e("    s_mov_b32 m0, s35")
    e("    s_mov_b32 exec_hi, 0")
    e("    buffer_load_dwordx4 v%d, s[24:27], s34 offen lds" % vLane16)
    vm.append("w")
    e("    s_mov_b32 exec_hi, -1")

    def dma_p(half):
        e("    s_add_u32 s36, s33, %d" % (3072 * half))
        e("    s_mov_b32 m0, s36")
        e("    s_add_u32 s37, s32, %d" % (3072 * half))
        for t in range(3):
            e("    buffer_load_dwordx4 v%d, s[20:23], s37 offen offset:%d %s lds" % (vLane16, 1024 * t, ld_flags))
            vm.append("p%d" % half)

    def coff(n):
        return (n & 1) * 98304 + (n >> 1) * 3072

    def dma_c(n):
        e("    s_add_u32 s36, s33, %d" % (6144 + 3072 * (n % nslot)))
        e("    s_mov_b32 m0, s36")
        e("    s_add_u32 s37, s15, %d" % coff(n))
        for t, v in enumerate((vLane16, vSw1, vSw2)):
            e("    buffer_load_dwordx4 v%d, s[16:19], s37 offen offset:%d %s lds" % (v, 1024 * t, ld_flags))
            vm.append("c%d" % n)

    dma_p(0)
    dma_c(0)
    dma_c(1)
    dma_p(1)
    for n in range(2, nslot):
        dma_c(n)

    e("    v_and_b32 v%d, 15, v0" % vT)
    e("    v_lshrrev_b32 v%d, 4, v0" % vWrd)
    e("    v_mul_u32_u24 v%d, 192, v%d" % (vBrd, vT))
    if swz:
        e("    v_lshrrev_b32 v%d, 2, v%d" % (vPrd, vT))
        e("    v_and_b32 v%d, 2, v%d" % (vPrd, vPrd))
        e("    v_xor_b32 v%d, v%d, v%d" % (vPrd, vPrd, vWrd))
        e("    v_lshl_add_u32 v%d, v%d, 4, v%d" % (vBrd, vPrd, vBrd))
    else:
        e("    v_lshl_add_u32 v%d, v%d, 4, v%d" % (vBrd, vWrd, vBrd))
    e("    v_add_u32 v%d, s33, v%d" % (vBrd, vBrd))
    e("    v_lshrrev_b32 v%d, 1, v%d" % (vPrd, vT))
    e("    v_mul_u32_u24 v%d, 192, v%d" % (vPrd, vPrd))
    e("    v_lshl_add_u32 v%d, v%d, 4, v%d" % (vPrd, vWrd, vPrd))
    e("    v_add_u32 v%d, s33, v%d" % (vPrd, vPrd))
    e("    s_mul_i32 s38, s14, %d" % STG)
    e("    s_add_u32 s38, s38, %d" % WB)
    e("    v_mul_u32_u24 v%d, 208, v%d" % (vSwr, vT))
    e("    v_lshl_add_u32 v%d, v%d, 4, v%d" % (vSwr, vWrd, vSwr))
    e("    v_add_u32 v%d, s38, v%d" % (vSwr, vSwr))
    for t in range(3):
        r = vSrd + t
        e("    v_add_u32 v%d, %d, v0" % (r, 64 * t))
        e("    v_mul_u32_u24 v%d, 5462, v%d" % (vB, r))
        e("    v_lshrrev_b32 v%d, 16, v%d" % (vB, vB))
        e("    v_add_u32 v%d, v%d, v%d" % (r, r, vB))
        e("    v_lshl_add_u32 v%d, v%d, 4, s38" % (r, r))
    e("    v_lshrrev_b32 v%d, 2, v%d" % (vB, vT))
    e("    v_lshl_add_u32 v%d, v%d, 3, v%d" % (vWrd, vWrd, vB))
    e("    v_mul_u32_u24 v%d, 192, v%d" % (vWrd, vWrd))
    e("    v_and_b32 v%d, 3, v%d" % (vT, vT))
    e("    v_lshl_add_u32 v%d, v%d, 4, v%d" % (vWrd, vT, vWrd))
    e("    v_add_u32 v%d, %d, v%d" % (vWrd, WB, vWrd))

    wait_for("w")
    e("    s_barrier")
    st(2)
    for X, base in ((0, vA1), (1, vA2)):
        for mt in range(6):
            for s in range(3):
                for hh in range(2):
                    r = base + (mt * 3 + s) * 4 + 2 * hh
                    off = X * W_BYTES + (32 * s + 4 * hh) * 192 + 64 * (mt >> 1) + 8 * (mt & 1)
                    e("    ds_read_b64_tr_b16 v[%d:%d], v%d offset:%d" % (r, r + 1, vWrd, off))
    e("    s_waitcnt lgkmcnt(0)")
    e("    s_barrier")
    st(3)

    def A(base, mt, s):
        r = base + (mt * 3 + s) * 4
        return "v[%d:%d]" % (r, r + 3)

    def q(r):
        return "v[%d:%d]" % (r, r + 3)

    for n in range(8):
        it, di = n >> 1, n & 1
        if di == 0:
            wait_for("p%d" % (it >> 1)) if vm.index("p%d" % (it >> 1)) > vm.index("c%d" % n) else None
        wait_for("c%d" % n)
        if n in (0, 3, 7):
            st({0: 4, 3: 5, 7: 6}[n])
        if di == 0:
            for s in range(3):
                e("    ds_read_b128 %s, v%d offset:%d" % (q(vO + 4 * s), vPrd, it * 1536 + 64 * s))
        for s in range(3):
            e("    ds_read_b128 %s, v%d offset:%d" % (q(vB + 4 * s), vBrd, 6144 + 3072 * (n % nslot) + 64 * s))
        if di == 0:
            e("    s_waitcnt lgkmcnt(3)")
            for i in range(12):
                e("    v_lshlrev_b32 v%d, 16, v%d" % (vPF + 2 * i, vO + i))
                e("    v_and_b32 v%d, 0xffff0000, v%d" % (vPF + 2 * i + 1, vO + i))
        e("    s_waitcnt lgkmcnt(0)")
        if n + nslot < 8:
            dma_c(n + nslot)
        else:
            e("    s_nop 1")
        for mt in range(6):
            for s in range(3):
                c = q(vPF + 4 * mt) if s == 0 else q(vAcc + 4 * mt)
                e("    v_mfma_f32_16x16x32_bf16 %s, %s, %s, %s" % (q(vAcc + 4 * mt), A(vA1, mt, s), q(vB + 4 * s), c))
        for i in range(8):
            e("    v_cvt_pk_bf16_f32 v%d, v%d, v%d" % (vB + i, vAcc + 2 * i, vAcc + 2 * i + 1))
        for i in range(8, 12):
            e("    v_cvt_pk_bf16_f32 v%d, v%d, v%d" % (vB + i, vAcc + 2 * i, vAcc + 2 * i + 1))
        e("    s_nop 1")
        for mt in range(6):
            for s in range(3):
                c = "0" if s == 0 else q(vAcc2 + 4 * mt)
                e("    v_mfma_f32_16x16x32_bf16 %s, %s, %s, %s" % (q(vAcc2 + 4 * mt), A(vA2, mt, s), q(vB + 4 * s), c))
        for i in range(12):
            e("    v_cvt_pk_bf16_f32 v%d, v%d, v%d" % (vO + i, vAcc2 + 2 * i, vAcc2 + 2 * i + 1))
            if i % 4 == 3:
                e("    ds_write_b128 v%d, %s offset:%d" % (vSwr, q(vO + i - 3), 64 * (i >> 2)))
        for t in range(3):
            e("    ds_read_b128 %s, v%d" % (q(vAcc + 4 * t), vSrd + t))
        e("    s_add_u32 s37, s15, %d" % coff(n))
        for t in range(3):
            e("    s_waitcnt lgkmcnt(%d)" % (2 - t))
            e("    buffer_store_dwordx4 %s, v%d, s[28:31], s37 offen offset:%d %s" % (q(vAcc + 4 * t), vLane16, 1024 * t, st_flags))
            vm.append("o%d" % n)
    if stamp:
        e("    s_waitcnt vmcnt(0)")
        st(7)
        e("    s_mov_b32 s66, 0x1000000")
        e("    s_mov_b32 s67, 0x20000")
        e("    s_lshl_b32 s3, s2, 3")
        e("    s_add_u32 s3, s3, s14")
        e("    s_lshl_b32 s3, s3, 6")
        for i in range(16):
            e("    v_mov_b32 v%d, s%d" % (12 + i, 48 + i))
        e("    v_mov_b32 v1, 0")
        e("    s_mov_b64 exec, 1")
        for i in range(4):
            e("    buffer_store_dwordx4 v[%d:%d], v1, s[64:67], s3 offen offset:%d" % (12 + 4 * i, 15 + 4 * i, 16 * i))
    e("L_end:")
    e("    s_endpgm")

    out = HEADER + ("; STAMP build\n" if stamp else "")
    out += "; @launch grid=(256,1,1) block=(512,1,1) lds=%d\n" % LDS
    out += '.amdgcn_target "amdgcn-amd-amdhsa--gfx950"\n.text\n.globl %s_kernel\n.p2align 8\n.type %s_kernel,@function\n' % (NAME, NAME)
    out += "\n".join(L) + "\n"
    out += """.section .rodata,"a"
.p2align 6
.amdhsa_kernel %s_kernel
  .amdhsa_next_free_vgpr 256
  .amdhsa_next_free_sgpr 72
  .amdhsa_accum_offset 256
  .amdhsa_group_segment_fixed_size 0
  .amdhsa_kernarg_size 56
  .amdhsa_user_sgpr_count 2
  .amdhsa_user_sgpr_kernarg_segment_ptr 1
  .amdhsa_system_sgpr_workgroup_id_x 1
.end_amdhsa_kernel
""" % NAME
    return out


if __name__ == "__main__":
    ap = argparse.ArgumentParser()
    ap.add_argument("-o", default="cdna_kernels/%s.s" % NAME)
    ap.add_argument("--ld", default="")
    ap.add_argument("--st", default="")
    ap.add_argument("--noswz", action="store_true")
    ap.add_argument("--stamp", action="store_true")
    a = ap.parse_args()
    open(a.o, "w").write(gen(a.ld, a.st, not a.noswz, stamp=a.stamp))
```

```python
import sys, argparse

NAME = "standalone__detection_seg_fpn_lateral__vision"
HEADER = open("cdna_kernels/%s.s.ref" % NAME).read().split("; Override launch")[0]

C_BYTES = 50331648
P_BYTES = 12582912
W_BYTES = 18432


def gen(ld_flags="", st_flags="", swz=True, nslot=3, stamp=False, spin=None, phasediag=False):
    L = []
    e = L.append

    def st(i):
        if stamp:
            e("    s_memrealtime s[%d:%d]" % (48 + 2 * i, 49 + 2 * i))
            e("    s_waitcnt lgkmcnt(0)")
    RING = 6144 + nslot * 3072
    WB = 8 * RING
    STG = 3328
    LDS = WB + 2 * W_BYTES
    assert LDS <= 163840

    vA1, vA2 = 0 + 112, 72 + 112
    vLane16 = 1
    vSw1, vSw2 = 2, 3
    vBrd = 4
    vPrd = 5
    vSwr = 6
    vSrd = 7
    vWrd = 10
    vT = 11
    vB = 12
    vPF = 24
    vAcc = 48
    vAcc2 = 72
    vO = 96

    e("%s_kernel:" % NAME)
    e("    s_cmp_ge_u32 s2, 256")
    e("    s_cbranch_scc1 L_end")
    if stamp:
        e("    s_memrealtime s[48:49]")
        e("    s_load_dwordx2 s[64:65], s[0:1], 48")
    e("    s_load_dwordx8 s[4:11], s[0:1], 0")
    e("    s_load_dwordx2 s[12:13], s[0:1], 32")
    e("    v_readfirstlane_b32 s14, v0")
    e("    v_and_b32 v0, 63, v0")
    e("    v_lshlrev_b32 v%d, 4, v0" % vLane16)
    e("    s_lshr_b32 s14, s14, 6")
    e("    s_mul_i32 s15, s2, 196608")
    e("    s_mul_i32 s3, s14, 12288")
    e("    s_add_u32 s15, s15, s3")
    e("    s_mul_i32 s32, s2, 49152")
    e("    s_mul_i32 s3, s14, 6144")
    e("    s_add_u32 s32, s32, s3")
    e("    s_mul_i32 s33, s14, %d" % RING)
    e("    s_and_b32 s34, s14, 3")
    e("    s_mul_i32 s34, s34, 4608")
    e("    s_mul_i32 s35, s14, 4608")
    e("    s_add_u32 s35, s35, %d" % WB)
    e("    s_mov_b32 s18, %d" % C_BYTES)
    e("    s_mov_b32 s19, 0x20000")
    e("    s_mov_b32 s22, %d" % P_BYTES)
    e("    s_mov_b32 s23, 0x20000")
    e("    s_mov_b32 s26, %d" % W_BYTES)
    e("    s_mov_b32 s27, 0x20000")
    e("    s_mov_b32 s30, %d" % C_BYTES)
    e("    s_mov_b32 s31, 0x20000")
    if swz:
        e("    v_xor_b32 v%d, 32, v%d" % (vSw2, vLane16))
        e("    v_and_b32 v%d, 32, v0" % vSw1)
        e("    v_xor_b32 v%d, v%d, v%d" % (vSw1, vSw1, vLane16))
    else:
        e("    v_mov_b32 v%d, v%d" % (vSw1, vLane16))
        e("    v_mov_b32 v%d, v%d" % (vSw2, vLane16))
    e("    s_mov_b32 m0, s35")
    e("    s_cmp_lt_u32 s14, 4")
    e("    s_waitcnt lgkmcnt(0)")
    e("    s_cselect_b32 s24, s8, s10")
    e("    s_cselect_b32 s25, s9, s11")
    e("    s_mov_b32 s16, s4")
    e("    s_mov_b32 s17, s5")
    e("    s_mov_b32 s20, s6")
    e("    s_mov_b32 s21, s7")
    e("    s_mov_b32 s28, s12")
    e("    s_mov_b32 s29, s13")
    st(1)

    vm = []

    def wait_for(tag):
        last = max(i for i, t in enumerate(vm) if t == tag)
        n = len(vm) - 1 - last
        e("    s_waitcnt vmcnt(%d)" % n)

    for t in range(4):
        e("    buffer_load_dwordx4 v%d, s[24:27], s34 offen offset:%d lds" % (vLane16, 1024 * t))
        vm.append("w")
    e("    s_add_u32 s34, s34, 4096")
    e("    s_add_u32 s35, s35, 4096")
    e("    s_mov_b32 m0, s35")
    e("    s_mov_b32 exec_hi, 0")
    e("    buffer_load_dwordx4 v%d, s[24:27], s34 offen lds" % vLane16)
    vm.append("w")
    e("    s_mov_b32 exec_hi, -1")

    def dma_p(half):
        e("    s_add_u32 s36, s33, %d" % (3072 * half))
        e("    s_mov_b32 m0, s36")
        e("    s_add_u32 s37, s32, %d" % (3072 * half))
        for t in range(3):
            e("    buffer_load_dwordx4 v%d, s[20:23], s37 offen offset:%d %s lds" % (vLane16, 1024 * t, ld_flags))
            vm.append("p%d" % half)

    def coff(n):
        return (n & 1) * 98304 + (n >> 1) * 3072

    def dma_c(n):
        e("    s_add_u32 s36, s33, %d" % (6144 + 3072 * (n % nslot)))
        e("    s_mov_b32 m0, s36")
        e("    s_add_u32 s37, s15, %d" % coff(n))
        for t, v in enumerate((vLane16, vSw1, vSw2)):
            e("    buffer_load_dwordx4 v%d, s[16:19], s37 offen offset:%d %s lds" % (v, 1024 * t, ld_flags))
            vm.append("c%d" % n)

    dma_p(0)
    dma_c(0)
    dma_c(1)
    dma_p(1)
    for n in range(2, nslot):
        dma_c(n)

    e("    v_and_b32 v%d, 15, v0" % vT)
    e("    v_lshrrev_b32 v%d, 4, v0" % vWrd)
    e("    v_mul_u32_u24 v%d, 192, v%d" % (vBrd, vT))
    if swz:
        e("    v_lshrrev_b32 v%d, 2, v%d" % (vPrd, vT))
        e("    v_and_b32 v%d, 2, v%d" % (vPrd, vPrd))
        e("    v_xor_b32 v%d, v%d, v%d" % (vPrd, vPrd, vWrd))
        e("    v_lshl_add_u32 v%d, v%d, 4, v%d" % (vBrd, vPrd, vBrd))
    else:
        e("    v_lshl_add_u32 v%d, v%d, 4, v%d" % (vBrd, vWrd, vBrd))
    e("    v_add_u32 v%d, s33, v%d" % (vBrd, vBrd))
    e("    v_lshrrev_b32 v%d, 1, v%d" % (vPrd, vT))
    e("    v_mul_u32_u24 v%d, 192, v%d" % (vPrd, vPrd))
    e("    v_lshl_add_u32 v%d, v%d, 4, v%d" % (vPrd, vWrd, vPrd))
    e("    v_add_u32 v%d, s33, v%d" % (vPrd, vPrd))
    e("    s_mul_i32 s38, s14, %d" % STG)
    e("    s_add_u32 s38, s38, %d" % WB)
    e("    v_mul_u32_u24 v%d, 208, v%d" % (vSwr, vT))
    e("    v_lshl_add_u32 v%d, v%d, 4, v%d" % (vSwr, vWrd, vSwr))
    e("    v_add_u32 v%d, s38, v%d" % (vSwr, vSwr))
    for t in range(3):
        r = vSrd + t
        e("    v_add_u32 v%d, %d, v0" % (r, 64 * t))
        e("    v_mul_u32_u24 v%d, 5462, v%d" % (vB, r))
        e("    v_lshrrev_b32 v%d, 16, v%d" % (vB, vB))
        e("    v_add_u32 v%d, v%d, v%d" % (r, r, vB))
        e("    v_lshl_add_u32 v%d, v%d, 4, s38" % (r, r))
    e("    v_lshrrev_b32 v%d, 2, v%d" % (vB, vT))
    e("    v_lshl_add_u32 v%d, v%d, 3, v%d" % (vWrd, vWrd, vB))
    e("    v_mul_u32_u24 v%d, 192, v%d" % (vWrd, vWrd))
    e("    v_and_b32 v%d, 3, v%d" % (vT, vT))
    e("    v_lshl_add_u32 v%d, v%d, 4, v%d" % (vWrd, vT, vWrd))
    e("    v_add_u32 v%d, %d, v%d" % (vWrd, WB, vWrd))

    wait_for("w")
    e("    s_barrier")
    st(2)
    for X, base in ((0, vA1), (1, vA2)):
        for mt in range(6):
            for s in range(3):
                for hh in range(2):
                    r = base + (mt * 3 + s) * 4 + 2 * hh
                    off = X * W_BYTES + (32 * s + 4 * hh) * 192 + 64 * (mt >> 1) + 8 * (mt & 1)
                    e("    ds_read_b64_tr_b16 v[%d:%d], v%d offset:%d" % (r, r + 1, vWrd, off))
    e("    s_waitcnt lgkmcnt(0)")
    e("    s_barrier")
    st(3)

    def A(base, mt, s):
        r = base + (mt * 3 + s) * 4
        return "v[%d:%d]" % (r, r + 3)

    def q(r):
        return "v[%d:%d]" % (r, r + 3)

    for n in range(8):
        it, di = n >> 1, n & 1
        if di == 0:
            wait_for("p%d" % (it >> 1)) if vm.index("p%d" % (it >> 1)) > vm.index("c%d" % n) else None
        wait_for("c%d" % n)
        if n in (0, 3, 7):
            st({0: 4, 3: 5, 7: 6}[n])
        if di == 0:
            for s in range(3):
                e("    ds_read_b128 %s, v%d offset:%d" % (q(vO + 4 * s), vPrd, it * 1536 + 64 * s))
        for s in range(3):
            e("    ds_read_b128 %s, v%d offset:%d" % (q(vB + 4 * s), vBrd, 6144 + 3072 * (n % nslot) + 64 * s))
        if di == 0:
            e("    s_waitcnt lgkmcnt(3)")
            for i in range(12):
                e("    v_lshlrev_b32 v%d, 16, v%d" % (vPF + 2 * i, vO + i))
                e("    v_and_b32 v%d, 0xffff0000, v%d" % (vPF + 2 * i + 1, vO + i))
        e("    s_waitcnt lgkmcnt(0)")
        if n + nslot < 8:
            dma_c(n + nslot)
        else:
            e("    s_nop 1")
        for mt in range(6):
            for s in range(3):
                c = q(vPF + 4 * mt) if s == 0 else q(vAcc + 4 * mt)
                e("    v_mfma_f32_16x16x32_bf16 %s, %s, %s, %s" % (q(vAcc + 4 * mt), A(vA1, mt, s), q(vB + 4 * s), c))
        for i in range(8):
            e("    v_cvt_pk_bf16_f32 v%d, v%d, v%d" % (vB + i, vAcc + 2 * i, vAcc + 2 * i + 1))
        for i in range(8, 12):
            e("    v_cvt_pk_bf16_f32 v%d, v%d, v%d" % (vB + i, vAcc + 2 * i, vAcc + 2 * i + 1))
        e("    s_nop 1")
        for mt in range(6):
            for s in range(3):
                c = "0" if s == 0 else q(vAcc2 + 4 * mt)
                e("    v_mfma_f32_16x16x32_bf16 %s, %s, %s, %s" % (q(vAcc2 + 4 * mt), A(vA2, mt, s), q(vB + 4 * s), c))
        for i in range(12):
            e("    v_cvt_pk_bf16_f32 v%d, v%d, v%d" % (vO + i, vAcc2 + 2 * i, vAcc2 + 2 * i + 1))
            if i % 4 == 3:
                e("    ds_write_b128 v%d, %s offset:%d" % (vSwr, q(vO + i - 3), 64 * (i >> 2)))
        for t in range(3):
            e("    ds_read_b128 %s, v%d" % (q(vAcc + 4 * t), vSrd + t))
        e("    s_add_u32 s37, s15, %d" % coff(n))
        for t in range(3):
            e("    s_waitcnt lgkmcnt(%d)" % (2 - t))
            e("    buffer_store_dwordx4 %s, v%d, s[28:31], s37 offen offset:%d %s" % (q(vAcc + 4 * t), vLane16, 1024 * t, st_flags))
            vm.append("o%d" % n)
    if stamp:
        e("    s_waitcnt vmcnt(0)")
        st(7)
        if spin is not None:
            base, mul, idx = spin
            e("    s_sub_u32 s68, s%d, s48" % (48 + 2 * idx))
            e("    s_mul_i32 s68, s68, %d" % mul)
            e("    s_add_u32 s68, s68, %d" % base)
            e("L_spin:")
            e("    s_sleep 8")
            e("    s_memrealtime s[70:71]")
            e("    s_waitcnt lgkmcnt(0)")
            e("    s_sub_u32 s69, s70, s48")
            e("    s_cmp_lt_u32 s69, s68")
            e("    s_cbranch_scc1 L_spin")
        if phasediag:
            e("    s_or_b32 s3, s2, s14")
            e("    s_cmp_lg_u32 s3, 0")
            e("    s_cbranch_scc1 L_end")
            e("    s_load_dwordx2 s[72:73], s[0:1], 40")
            e("    s_mov_b32 s74, 256")
            e("    s_mov_b32 s75, 0x20000")
            e("    s_mov_b64 exec, 1")
            e("    v_mov_b32 v1, 0")
            for bi, (srd, npg, rowb) in enumerate((("s[16:19]", 24, 196608), ("s[28:31]", 24, 196608), ("s[20:23]", 6, 49152))):
                e("    s_mov_b32 s%d, 0" % (80 + bi))
                e("    s_mov_b32 s%d, 0xffff" % (84 + bi))
                for pg in range(npg):
                    base = pg << 21
                    while any(((base + o) // rowb) % 8 == 0 for o in (0, 32767)):
                        base += 32768
                    for par in range(2):
                        e("    s_mov_b32 s%d, 0xffff" % (76 + par))
                        for k in range(5):
                            e("    s_mov_b32 s3, %d" % (base + par * 8192 + (k & 1) * 16384 + 1280 * k))
                            e("    s_memtime s[68:69]")
                            e("    s_waitcnt lgkmcnt(0)")
                            e("    buffer_load_dword v2, v1, %s, s3 offen" % srd)
                            e("    s_waitcnt vmcnt(0)")
                            e("    s_memtime s[70:71]")
                            e("    s_waitcnt lgkmcnt(0)")
                            e("    s_sub_u32 s3, s70, s68")
                            e("    s_min_u32 s%d, s%d, s3" % (76 + par, 76 + par))
                    e("    s_cmp_gt_u32 s76, s77")
                    e("    s_cselect_b32 s3, %d, 0" % (1 << pg))
                    e("    s_or_b32 s%d, s%d, s3" % (80 + bi, 80 + bi))
                    e("    s_sub_u32 s3, s76, s77")
                    e("    s_abs_i32 s3, s3")
                    e("    s_min_u32 s%d, s%d, s3" % (84 + bi, 84 + bi))
            e("    s_getreg_b32 s83, hwreg(HW_REG_XCC_ID, 0, 4)")
            e("    s_xor_b32 s87, s80, s81")
            for i, r in enumerate((80, 81, 82, 83, 84, 85, 86, 87, 16, 17, 28, 29, 20, 21, 64, 65)):
                e("    v_mov_b32 v%d, s%d" % (12 + i, r))
            for i in range(4):
                e("    buffer_store_dwordx4 v[%d:%d], v1, s[72:75], 0 offen offset:%d" % (12 + 4 * i, 15 + 4 * i, 16 * i))
            e("    s_endpgm")
        e("    s_mov_b32 s66, 0x1000000")
        e("    s_mov_b32 s67, 0x20000")
        e("    s_lshl_b32 s3, s2, 3")
        e("    s_add_u32 s3, s3, s14")
        e("    s_lshl_b32 s3, s3, 6")
        for i in range(16):
            e("    v_mov_b32 v%d, s%d" % (12 + i, 48 + i))
        e("    v_mov_b32 v1, 0")
        e("    s_mov_b64 exec, 1")
        for i in range(4):
            e("    buffer_store_dwordx4 v[%d:%d], v1, s[64:67], s3 offen offset:%d" % (12 + 4 * i, 15 + 4 * i, 16 * i))
    e("L_end:")
    e("    s_endpgm")

    out = HEADER + ("; STAMP build\n" if stamp else "")
    out += "; @launch grid=(256,1,1) block=(512,1,1) lds=%d\n" % LDS
    out += '.amdgcn_target "amdgcn-amd-amdhsa--gfx950"\n.text\n.globl %s_kernel\n.p2align 8\n.type %s_kernel,@function\n' % (NAME, NAME)
    out += "\n".join(L) + "\n"
    out += """.section .rodata,"a"
.p2align 6
.amdhsa_kernel %s_kernel
  .amdhsa_next_free_vgpr 256
  .amdhsa_next_free_sgpr 96
  .amdhsa_accum_offset 256
  .amdhsa_group_segment_fixed_size 0
  .amdhsa_kernarg_size 56
  .amdhsa_user_sgpr_count 2
  .amdhsa_user_sgpr_kernarg_segment_ptr 1
  .amdhsa_system_sgpr_workgroup_id_x 1
.end_amdhsa_kernel
""" % NAME
    return out


if __name__ == "__main__":
    ap = argparse.ArgumentParser()
    ap.add_argument("-o", default="cdna_kernels/%s.s" % NAME)
    ap.add_argument("--ld", default="")
    ap.add_argument("--st", default="")
    ap.add_argument("--noswz", action="store_true")
    ap.add_argument("--stamp", action="store_true")
    ap.add_argument("--spin", default=None)
    ap.add_argument("--phasediag", action="store_true")
    a = ap.parse_args()
    open(a.o, "w").write(gen(a.ld, a.st, not a.noswz, stamp=a.stamp, spin=None if a.spin is None else tuple(int(x) for x in a.spin.split(",")), phasediag=a.phasediag))
```

```python
import argparse

NAME = "standalone__detection_seg_fpn_lateral__vision"
HEADER = open("cdna_kernels/%s.s.ref" % NAME).read().split("; Override launch")[0]
C_BYTES, P_BYTES, W_BYTES = 50331648, 12582912, 18432


def gen(ld="nt", st="sc1", D=3, plan="A", place="flat", nstatic=1, stamp=False, spin=None, nomfma=False, fine=False, thr=0, thrfrom=0, sched=None):
    L = []
    e = L.append

    def stp(i):
        if stamp:
            e("    s_memrealtime s[%d:%d]" % (48 + 2 * i, 49 + 2 * i))
            e("    s_waitcnt lgkmcnt(0)")

    def fs(i):
        if fine:
            e("    s_memrealtime s[80:81]")
            e("    s_waitcnt lgkmcnt(0)")
            e("    v_writelane_b32 v255, s80, %d" % i)

    ROW = 6144
    PB = 12 * ROW
    SB = PB + 4 * ROW
    WB = SB + 4 * ROW
    LDS = WB + 2 * W_BYTES
    assert LDS <= 163840

    def rowslot(h):
        r = h % 4
        return r * 4 * ROW if r < 3 else WB

    aWf, aW2 = 0, 72
    vLane16, vLaneB = 1, 2
    vCA, vCB = 3, 6
    vP1, vP2 = 9, 10
    vBe, vBo = 11, 12
    vBe3, vBo3 = 13, 14
    vPr = 15
    vSe, vSo = 16, 17
    vSr = 18
    vWt, vWl, vXw, vXr = 24, 25, 26, 27
    vT, vU, vJ, vG = 28, 29, 30, 31
    vB = 32
    vQ = 56
    vAcc = 80
    vO = 128
    vR = 152
    vWlF = 176
    NV = 212 if sched is None else 256
    NA = 144 if sched is None else 240
    sC, sP, sC1 = 40, 44, 84

    def q(r, f="v"):
        return "%s[%d:%d]" % (f, r, r + 3)

    e("%s_kernel:" % NAME)
    e("    s_cmp_ge_u32 s2, 256")
    e("    s_cbranch_scc1 L_end")
    if stamp:
        e("    s_memrealtime s[48:49]")
        e("    s_memtime s[76:77]")
    if stamp or place == "oracle":
        e("    s_load_dwordx2 s[64:65], s[0:1], 48")
    e("    s_load_dwordx8 s[4:11], s[0:1], 0")
    e("    s_load_dwordx2 s[12:13], s[0:1], 32")
    e("    v_readfirstlane_b32 s14, v0")
    e("    v_and_b32 v0, 63, v0")
    e("    v_lshlrev_b32 v%d, 4, v0" % vLane16)
    e("    s_lshr_b32 s14, s14, 6")
    e("    s_lshl_b32 s3, s14, 3")
    e("    s_bitcmp1_b32 s2, 3")
    e("    s_mov_b32 s15, 0xcb765210")
    e("    s_cselect_b32 s15, 0xbc672501, s15")
    e("    s_lshr_b32 s15, s15, s3")
    e("    s_bfe_u32 s32, s2, 0x10002")
    e("    s_andn2_b32 s39, s2, 4")
    e("    s_mul_i32 s33, s14, %d" % ROW)
    e("    s_and_b32 s34, s14, 1")
    e("    s_mul_i32 s34, s34, 9216")
    e("    s_mul_i32 s35, s14, 9216")
    e("    s_add_u32 s35, s35, %d" % WB)

    def item_offsets(k, par):
        e("    s_bfe_u32 s3, s15, 0x%x" % (0x40000 + 4 * (k & 1)))
        e("    s_lshl_b32 s37, %s, 3" % par)
        e("    s_xor_b32 s3, s3, s37")
        e("    s_mul_i32 s3, s3, 1536")
        e("    s_add_u32 s37, s39, %d" % ((k >> 1) * 4))
        e("    s_mul_i32 s37, s37, 49152")
        e("    s_add_u32 s%d, s37, s3" % (sP + k))
        e("    s_lshl_b32 s37, s37, 1")
        e("    s_add_u32 s3, s37, s3")
        e("    s_lshl_b32 s%d, s3, 1" % (sC + k))
        e("    s_add_u32 s%d, s%d, 98304" % (sC1 + k, sC + k))

    e("    s_xor_b32 s38, s14, s32")
    e("    s_and_b32 s38, s38, 1")
    nst = 4 if place == "flat" else nstatic
    item_offsets(0, "s38")
    e("    s_mov_b32 s18, %d" % C_BYTES)
    e("    s_mov_b32 s19, 0x20000")
    e("    s_mov_b32 s22, %d" % P_BYTES)
    e("    s_mov_b32 s23, 0x20000")
    e("    s_mov_b32 s26, %d" % W_BYTES)
    e("    s_mov_b32 s27, 0x20000")
    e("    s_mov_b32 s30, %d" % C_BYTES)
    e("    s_mov_b32 s31, 0x20000")
    e("    v_lshrrev_b32 v%d, 3, v0" % vT)
    for t in range(3):
        mask = sum((((8 * t + i) // 3 >> 1) & 1) << i for i in range(8))
        e("    v_lshrrev_b32 v%d, v%d, %d" % (vU, vT, mask) if mask <= 64 else "    s_mov_b32 s3, %d" % mask)
        if mask > 64:
            e("    v_lshrrev_b32 v%d, v%d, s3" % (vU, vT))
        e("    v_and_b32 v%d, 1, v%d" % (vU, vU))
        e("    v_lshlrev_b32 v%d, 6, v%d" % (vU, vU))
        e("    v_xor_b32 v%d, v%d, v%d" % (vCA + t, vU, vLane16))
        e("    v_xor_b32 v%d, 32, v%d" % (vCB + t, vCA + t))
        e("    v_add_u32 v%d, 49152, v%d" % (vCB + t, vCB + t))
    e("    v_xor_b32 v%d, 32, v%d" % (vP2, vLane16))
    e("    v_add_u32 v%d, %d, v%d" % (vP2, 24576 - 1536, vP2))
    e("    v_cmp_gt_u32 vcc, 32, v0")
    e("    v_add_u32 v%d, 49152, v%d" % (vLaneB, vLane16))
    e("    s_cmp_lt_u32 s14, 2")
    e("    v_cndmask_b32 v%d, v%d, v%d, vcc" % (vP1, vP2, vLane16))
    e("    s_waitcnt lgkmcnt(0)")
    e("    s_cselect_b32 s24, s8, s10")
    e("    s_cselect_b32 s25, s9, s11")
    e("    s_mov_b32 s16, s4")
    e("    s_mov_b32 s17, s5")
    e("    s_mov_b32 s20, s6")
    e("    s_mov_b32 s21, s7")
    e("    s_mov_b32 s28, s12")
    e("    s_mov_b32 s29, s13")
    if place == "oracle":
        e("    s_add_u32 s68, s64, 0x1000200")
        e("    s_addc_u32 s69, s65, 0")
        e("    s_load_dword s70, s[68:69], 0")

    vm = []
    vmdone = [0]

    def wait_for(tag):
        last = max(i for i, t in enumerate(vm) if t == tag)
        n = len(vm) - 1 - last
        assert n < 64
        vmdone[0] = max(vmdone[0], last + 1)
        e("    s_waitcnt vmcnt(%d)" % n)

    def op_w(t):
        g0 = (t // 4) * 4096
        return ("w", "s35+%d" % g0, ["    s_add_u32 m0, s35, %d" % g0, "    s_add_u32 s36, s34, %d" % g0],
                "    buffer_load_dwordx4 v%d, s[24:27], s36 offen offset:%d lds" % (vLane16, 1024 * (t % 4)))

    def ops_h(h):
        k, di = h >> 1, h & 1
        res = []
        if di == 0:
            off = PB + (k & 1) * 3072
            for t, v in enumerate((vLane16, vP1, vP2)):
                res.append(("h%d" % h, "p%d" % h, ["    s_add_u32 m0, s33, %d" % off, "    s_nop 0"],
                            "    buffer_load_dwordx4 v%d, s[20:23], s%d offen offset:%d %s lds" % (v, sP + k, 1024 * t, ld)))
        for pc, vb in enumerate((vCA, vCB)):
            off = rowslot(h) + 3072 * pc
            so = "s%d" % ((sC1 if di else sC) + k)
            pre = "    s_nop 0"
            for t in range(3):
                res.append(("h%d" % h, "c%d_%d" % (h, pc), ["    s_add_u32 m0, s33, %d" % off, pre],
                            "    buffer_load_dwordx4 v%d, s[16:19], %s offen offset:%d %s lds" % (vb + t, so, 1024 * t, ld)))
        return res

    def emit(ops):
        key = None
        for tag, kk, pre, ins in ops:
            if kk != key:
                for x in pre:
                    e(x)
            key = kk
            e(ins)
            vm.append(tag)

    W = [op_w(t) for t in range(9)]
    H = [ops_h(h) for h in range(8)]
    issued = [0] * 8

    def issue(h, n=None):
        a = issued[h]
        b = len(H[h]) if n is None else min(len(H[h]), a + n)
        emit(H[h][a:b])
        issued[h] = b

    pat, pre_n, mid, late = {
        "A": ("wdwwdwwdwwdww", 15, (), (2,)),
        "B": ("wdwwdwwdwwdww", 9, (1,), (2,)),
        "C": ("wwwwwwwww", 9, (1,), (2,)),
        "D": ("dwdwdwdwdwdwdwdwdw", 15, (), (2,)),
        "E": ("wdwwdwwdwwdww", 12, (1,), (2,)),
        "F": ("wwdwwwdwwwdw", 9, (1,), (2,)),
        "G": ("wdwwdwwdwwdww", 15, (2,), ()),
    }[plan]
    seq, wi, di_ = [], 0, 0
    for ch in pat:
        if ch == "w":
            seq.append(W[wi]); wi += 1
        else:
            seq.append(H[0][di_]); di_ += 1
    assert wi == 9
    emit(seq)
    issued[0] = di_
    issue(0)
    if pre_n > 9:
        issue(1, pre_n - 9)

    if place == "oracle":
        e("    s_waitcnt lgkmcnt(0)")
        e("    s_getreg_b32 s71, hwreg(HW_REG_XCC_ID, 2, 1)")
    for k in range(1, 4):
        if k < nst:
            item_offsets(k, "s38")
        else:
            e("    s_add_u32 s3, s39, %d" % ((k >> 1) * 4))
            e("    s_mul_i32 s3, s3, 196608")
            e("    s_add_u32 s3, s3, 98304")
            e("    s_lshr_b32 s3, s3, 21")
            e("    s_lshr_b32 s3, s70, s3")
            e("    s_xor_b32 s3, s3, s71")
            e("    s_and_b32 s72, s3, 1")
            item_offsets(k, "s72")

    e("    v_and_b32 v%d, 15, v0" % vJ)
    e("    v_lshrrev_b32 v%d, 4, v0" % vG)
    e("    v_lshrrev_b32 v%d, 2, v%d" % (vT, vJ))
    e("    v_and_b32 v%d, 2, v%d" % (vT, vT))
    e("    v_xor_b32 v%d, v%d, v%d" % (vT, vT, vG))
    e("    v_lshlrev_b32 v%d, 4, v%d" % (vT, vT))
    e("    v_add_u32 v%d, s33, v%d" % (vT, vT))
    e("    v_mul_u32_u24 v%d, 192, v%d" % (vPr, vJ))
    e("    v_lshl_add_u32 v%d, v%d, 1, v%d" % (vBe, vPr, vT))
    e("    v_add_u32 v%d, v%d, v%d" % (vPr, vPr, vT))
    e("    v_add_u32 v%d, %d, v%d" % (vPr, PB, vPr))
    e("    v_and_b32 v%d, 2, v%d" % (vU, vJ))
    e("    v_lshlrev_b32 v%d, 5, v%d" % (vU, vU))
    e("    v_sub_u32 v%d, v%d, v%d" % (vBo, vBe, vU))
    e("    v_add_u32 v%d, v%d, v%d" % (vBe, vBe, vU))
    e("    v_add_u32 v%d, %d, v%d" % (vBe3, WB, vBe))
    e("    v_add_u32 v%d, %d, v%d" % (vBo3, WB, vBo))
    e("    s_add_u32 s73, s33, %d" % SB)
    e("    v_and_b32 v%d, 7, v%d" % (vU, vJ))
    e("    v_xor_b32 v%d, v%d, v%d" % (vU, vU, vG))
    e("    v_mul_u32_u24 v%d, 24, v%d" % (vT, vJ))
    e("    v_add_u32 v%d, v%d, v%d" % (vSe, vT, vU))
    e("    v_lshl_add_u32 v%d, v%d, 4, s73" % (vSe, vSe))
    e("    v_xor_b32 v%d, 64, v%d" % (vSo, vSe))
    for t in range(6):
        r = vSr + t
        e("    v_add_u32 v%d, %d, v0" % (r, 64 * t))
        e("    v_mul_u32_u24 v%d, 2731, v%d" % (vT, r))
        e("    v_bfe_u32 v%d, v%d, 16, 3" % (vT, vT))
        e("    v_xor_b32 v%d, v%d, v%d" % (r, r, vT))
        e("    v_lshl_add_u32 v%d, v%d, 4, s73" % (r, r))
    e("    v_lshrrev_b32 v%d, 2, v%d" % (vT, vJ))
    e("    v_and_b32 v%d, 3, v%d" % (vU, vJ))
    e("    v_lshl_add_u32 v%d, v%d, 3, v%d" % (vWt, vG, vT))
    e("    v_mul_u32_u24 v%d, 192, v%d" % (vWt, vWt))
    e("    v_lshl_add_u32 v%d, v%d, 4, v%d" % (vWt, vU, vWt))
    e("    v_add_u32 v%d, %d, v%d" % (vWt, WB + W_BYTES, vWt))
    e("    s_and_b32 s74, s14, 1")
    e("    s_mul_i32 s3, s74, 768")
    e("    s_add_u32 s3, s3, %d" % WB)
    e("    v_lshl_add_u32 v%d, v%d, 3, v%d" % (vWl, vT, vU))
    e("    v_mul_u32_u24 v%d, 192, v%d" % (vWl, vWl))
    e("    v_lshl_add_u32 v%d, v%d, 4, v%d" % (vWl, vG, vWl))
    e("    v_add_u32 v%d, s3, v%d" % (vWl, vWl))
    e("    v_add_u32 v%d, %d, v%d" % (vXr, SB, vLane16))
    e("    s_lshl_b32 s3, s74, 3")
    e("    v_add_u32 v%d, s3, v%d" % (vXw, vXr))

    wait_for("w")
    e("    s_barrier")
    stp(2)
    for h in mid:
        issue(h)

    def tr_reads(mts):
        for mt in mts:
            for s in range(3):
                for hh in range(2):
                    r = aW2 + (mt * 3 + s) * 4 + 2 * hh
                    off = (32 * s + 4 * hh) * 192 + 64 * (mt >> 1) + 8 * (mt & 1)
                    e("    ds_read_b64_tr_b16 a[%d:%d], v%d offset:%d" % (r, r + 1, vWt, off))

    for s in range(3):
        for ks in range(3):
            e("    ds_read_b128 %s, v%d offset:%d" % (q(vWlF + (s * 3 + ks) * 4), vWl, 32 * s * 192 + 64 * ks))
    e("    s_cmp_ge_u32 s14, 2")
    e("    s_cbranch_scc1 L_wf_hi")
    for half in range(2):
        if half:
            e("L_wf_hi:")
        mine = [3 * half + i for i in range(3)]
        other = [3 * (1 - half) + i for i in range(3)]
        tr_reads(mine[:2])
        for i, mt in enumerate(mine):
            tr_reads([mine[2]] if i == 0 else [other[i - 1]])
            e("    s_waitcnt lgkmcnt(12)")
            for s in range(3):
                for ks in range(3):
                    d = vAcc + (i * 3 + s) * 4
                    e("    v_mfma_f32_16x16x32_bf16 %s, %s, %s, %s" % (
                        q(d), q(vWlF + (s * 3 + ks) * 4), q(aW2 + (mt * 3 + ks) * 4, "a"), "0" if ks == 0 else q(d)))
        tr_reads([other[2]])
        for i, mt in enumerate(mine):
            for s in range(3):
                d = vAcc + (i * 3 + s) * 4
                o = vO + (i * 3 + s) * 2
                e("    v_cvt_pk_bf16_f32 v%d, v%d, v%d" % (o, d, d + 1))
                e("    v_cvt_pk_bf16_f32 v%d, v%d, v%d" % (o + 1, d + 2, d + 3))
                e("    ds_write_b64 v%d, v[%d:%d] offset:%d" % (vXw, o, o + 1, 1024 * (mt * 3 + s)))
        if not half:
            e("    s_branch L_wf_done")
    e("L_wf_done:")
    e("    s_waitcnt lgkmcnt(0)")
    e("    s_barrier")
    stp(3)
    for h in late:
        if h < D:
            issue(h)

    pending = []
    for h in range(8):
        k, di = h >> 1, h & 1
        if h == 0:
            for f in range(9):
                e("    ds_read_b128 %s, v%d offset:%d" % (q(aWf + 4 * f, "a"), vXr, 1024 * f))
        fs(5 * h)
        wait_for("h%d" % h)
        fs(5 * h + 1)
        if h in (0, 3, 7):
            stp({0: 4, 3: 5, 7: 6}[h])
        if di == 0:
            for s in range(3):
                e("    ds_read_b128 %s, v%d offset:%d" % (q(vO + 4 * s), vPr, (k & 1) * 3072 + 64 * s))
        be, bo, boff = (vBe, vBo, rowslot(h)) if h % 4 < 3 else (vBe3, vBo3, 0)
        if h == 0:
            for f in range(9, 18):
                e("    ds_read_b128 %s, v%d offset:%d" % (q(aWf + 4 * f, "a"), vXr, 1024 * f))
            e("    s_waitcnt lgkmcnt(9)")
        for x in range(6):
            e("    ds_read_b128 %s, v%d offset:%d" % (q(vB + 4 * x), bo if x & 1 else be, boff + 64 * x))
        for hn in range(h + 1, min(8, h + min(D, 3) + 1)):
            issue(hn)
        fs(5 * h + 2)
        if di == 0:
            if h:
                e("    s_waitcnt lgkmcnt(6)")
            for mt in range(6):
                for s in range(3):
                    d = vQ + 4 * mt
                    e("    v_mfma_f32_16x16x32_bf16 %s, %s, %s, %s" % (
                        q(d), q(aW2 + (mt * 3 + s) * 4, "a"), q(vO + 4 * s), "0" if s == 0 else q(d)))
        e("    s_waitcnt lgkmcnt(%d)" % (0 if (D == 4 or h == 0) else 3))
        if h == 0:
            e("    s_barrier")
        if D == 4 and h + 4 < 8:
            issue(h + 4)

        def cvt_write(dj, sp):
            o = vO + 12 * dj + 4 * sp
            a = vAcc + 24 * dj + 8 * sp
            r = ["    v_cvt_pk_bf16_f32 v%d, v%d, v%d" % (o + i, a + 2 * i, a + 2 * i + 1) for i in range(4)]
            x = 3 * dj + sp
            r.append("    ds_write_b128 v%d, %s offset:%d" % (vSo if x & 1 else vSe, q(o), 128 * (x >> 1)))
            return r

        pend = []
        n = 0
        for dj in range(2):
            if dj == 1 and not (D == 4 or h == 0):
                e("    s_waitcnt lgkmcnt(1)")
            for mt in range(6):
                for s in range(3):
                    d = vAcc + 24 * dj + 4 * mt
                    e("    v_mfma_f32_16x16x32_bf16 %s, %s, %s, %s" % (
                        q(d), q(aWf + (mt * 3 + s) * 4, "a"), q(vB + 12 * dj + 4 * s), q(vQ + 4 * mt) if s == 0 else q(d)))
                    n += 1
                    if n % 6 == 0 and n >= 12:
                        x = n // 6 - 2
                        pend = cvt_write(x // 3, x % 3)
                    if pend and n % 6 != 0:
                        e(pend.pop(0))
        for x in pend:
            e(x)
        e("    s_nop 2")
        for x in cvt_write(1, 2):
            e(x)
        def rbuf(hh, t):
            if sched is None:
                return q(vR + 4 * t)
            return q(144 + 24 * hh + 4 * t, "a") if hh < 4 else q(vR + 24 * (hh - 4) + 4 * t)

        for t in range(6):
            e("    ds_read_b128 %s, v%d" % (rbuf(h, t), vSr + t))
            pending.append((h, t))
        fs(5 * h + 3)
        n = len(pending) if (sched is None or h == 7) else min(sched[h], len(pending))
        for _ in range(n):
            hh, t = pending.pop(0)
            w = []
            if thr and h >= thrfrom:
                w.append("vmcnt(%d)" % thr)
            elif len(vm) - vmdone[0] >= 60:
                w.append("vmcnt(58)")
                vmdone[0] = len(vm) - 58
            if hh == h:
                w.append("lgkmcnt(%d)" % (5 - t))
            if w:
                e("    s_waitcnt " + " ".join(w))
            e("    buffer_store_dwordx4 %s, v%d, s[28:31], s%d offen offset:%d %s" % (
                rbuf(hh, t), vLane16 if t < 3 else vLaneB, (sC if hh % 2 == 0 else sC1) + (hh >> 1), 1024 * (t % 3), st))
            vm.append("o%d" % hh)
        fs(5 * h + 4)
    if stamp:
        e("    s_waitcnt vmcnt(0)")
        e("    s_memtime s[78:79]")
        stp(7)
        e("    s_sub_u32 s50, s78, s76")
        e("    s_mov_b32 s51, 0x7000")
        if spin is not None:
            b0, mul, idx = spin
            e("    s_sub_u32 s68, s%d, s48" % (48 + 2 * idx))
            e("    s_mul_i32 s68, s68, %d" % mul)
            e("    s_add_u32 s68, s68, %d" % b0)
            e("L_spin:")
            e("    s_sleep 8")
            e("    s_memrealtime s[70:71]")
            e("    s_waitcnt lgkmcnt(0)")
            e("    s_sub_u32 s69, s70, s48")
            e("    s_cmp_lt_u32 s69, s68")
            e("    s_cbranch_scc1 L_spin")
        e("    s_mov_b32 s66, 0x1000000")
        e("    s_mov_b32 s67, 0x20000")
        e("    s_lshl_b32 s3, s2, 2")
        e("    s_add_u32 s3, s3, s14")
        e("    s_lshl_b32 s3, s3, 6")
        for i in range(16):
            e("    v_mov_b32 v%d, s%d" % (32 + i, 48 + i))
        if fine:
            e("    s_lshl_b32 s37, s3, 2")
            e("    s_add_u32 s37, s37, 0x800000")
            e("    v_lshlrev_b32 v1, 2, v0")
            e("    buffer_store_dword v255, v1, s[64:67], s37 offen")
        e("    v_mov_b32 v1, 0")
        e("    s_mov_b64 exec, 1")
        for i in range(4):
            e("    buffer_store_dwordx4 v[%d:%d], v1, s[64:67], s3 offen offset:%d" % (32 + 4 * i, 35 + 4 * i, 16 * i))
    e("L_end:")
    e("    s_endpgm")

    if nomfma:
        L = [x for x in L if "v_mfma" not in x]
    out = HEADER + ("; STAMP build\n" if stamp else "")
    out += "; @launch grid=(256,1,1) block=(256,1,1) lds=%d\n" % LDS
    out += '.amdgcn_target "amdgcn-amd-amdhsa--gfx950"\n.text\n.globl %s_kernel\n.p2align 8\n.type %s_kernel,@function\n' % (NAME, NAME)
    out += "\n".join(L) + "\n"
    out += """.section .rodata,"a"
.p2align 6
.amdhsa_kernel %s_kernel
  .amdhsa_next_free_vgpr %d
  .amdhsa_next_free_sgpr 88
  .amdhsa_accum_offset %d
  .amdhsa_group_segment_fixed_size 0
  .amdhsa_kernarg_size 56
  .amdhsa_user_sgpr_count 2
  .amdhsa_user_sgpr_kernarg_segment_ptr 1
  .amdhsa_system_sgpr_workgroup_id_x 1
.end_amdhsa_kernel
""" % (NAME, NV + NA, NV)
    return out


if __name__ == "__main__":
    ap = argparse.ArgumentParser()
    ap.add_argument("-o", default="cdna_kernels/%s.s" % NAME)
    ap.add_argument("--ld", default="nt")
    ap.add_argument("--st", default="sc1")
    ap.add_argument("-D", type=int, default=3)
    ap.add_argument("--plan", default="A")
    ap.add_argument("--place", default="flat")
    ap.add_argument("--nstatic", type=int, default=1)
    ap.add_argument("--stamp", action="store_true")
    ap.add_argument("--nomfma", action="store_true")
    ap.add_argument("--fine", action="store_true")
    ap.add_argument("--thr", type=int, default=0)
    ap.add_argument("--sched", default=None)
    ap.add_argument("--thrfrom", type=int, default=0)
    ap.add_argument("--spin", default=None)
    a = ap.parse_args()
    open(a.o, "w").write(gen(a.ld, a.st, a.D, a.plan, a.place, a.nstatic, a.stamp,
                             None if a.spin is None else tuple(int(x) for x in a.spin.split(",")), a.nomfma, a.fine, a.thr, a.thrfrom,
                             None if a.sched is None else [int(x) for x in a.sched.split(',')]))
```

```python
import argparse

NAME = "standalone__detection_seg_fpn_lateral__vision"
HEADER = open("cdna_kernels/%s.s.ref" % NAME).read().split("; Override launch")[0]
C_BYTES, P_BYTES, W_BYTES = 50331648, 12582912, 18432


def gen(ld="nt", st="sc0 sc1", st2="", pat="wdwwdwwdwwdww", pts="8,13,13,16,16,16,21", taper="4444444333222111",
        place="auto", nstatic=3, split=21, rot=0, bar=4, wbfrom=14, slots=8, rdstep=0, tries=6, tstride=48,
        hoist=3, stpos=7, tlb=0, stamp=False, fine=False, dbgout=False, force=False, nomfma=False):
    L = []
    e = L.append
    pts = [int(x) for x in pts.split(",")]

    NS, NP = 6, 3
    PO = NS * 3072
    SO = PO + NP * 1536
    WAVE = SO + 3072
    XB = 4 * WAVE
    WB = XB + W_BYTES
    LDS = WB + 2 * W_BYTES
    assert LDS <= 163840, LDS

    aWf, aW2 = 0, 72
    vLane16, vSw1, vSw2, vBrd, vPrd, vSwr, vSrd = 1, 2, 3, 4, 5, 6, 8
    vWt, vWl, vXw, vXr, vT, vU, vJ, vG, vA, vD = 11, 12, 13, 14, 15, 16, 18, 19, 20, 21
    vWm = 17
    vB, vP, vQ, vAcc, vO, vR = 24, 48, 60, 108, 132, 144
    vWlF, vW2t, vWa, vWo = 156, 60, 108, 192
    NV = 256 if fine else 212
    sC, sP = 76, 84

    vm, lg = [], []

    def q(r, f="v"):
        return "%s[%d:%d]" % (f, r, r + 3)

    def count_after(lst, tag):
        idx = [i for i, t in enumerate(lst) if t == tag]
        return None if not idx else len(lst) - 1 - idx[-1]

    def wait_vm(tag):
        n = count_after(vm, tag)
        if n is not None:
            assert n < 63
            e("    s_waitcnt vmcnt(%d)" % n)
            del vm[:len(vm) - n]

    def wait_lg(tag):
        n = count_after(lg, tag)
        if n is not None:
            n = min(n, 14)
            e("    s_waitcnt lgkmcnt(%d)" % n)
            del lg[:len(lg) - n]

    def ds(text, tag):
        e("    " + text)
        lg.append(tag)

    def stp(i):
        if stamp:
            e("    s_memrealtime s[%d:%d]" % (48 + 2 * i, 49 + 2 * i))
            e("    s_waitcnt lgkmcnt(0)")
            del lg[:]

    def fs(i):
        if fine:
            e("    s_memrealtime s[38:39]")
            e("    s_waitcnt lgkmcnt(0)")
            e("    v_writelane_b32 v255, s38, %d" % i)
            del lg[:]

    e("%s_kernel:" % NAME)
    e("    s_cmp_ge_u32 s2, 256")
    e("    s_cbranch_scc1 L_end")
    if stamp:
        e("    s_memrealtime s[48:49]")
        e("    s_memtime s[44:45]")
        e("    s_load_dwordx2 s[64:65], s[0:1], 48")
    e("    s_load_dwordx8 s[4:11], s[0:1], 0")
    e("    s_load_dwordx4 s[96:99], s[0:1], 32")
    e("    v_readfirstlane_b32 s14, v0")
    e("    v_and_b32 v0, 63, v0")
    e("    v_lshlrev_b32 v%d, 4, v0" % vLane16)
    e("    s_lshr_b32 s14, s14, 6")
    e("    s_and_b32 s3, s2, 1")
    e("    s_lshl_b32 s3, s3, 2")
    e("    s_add_u32 s3, s3, s14")
    e("    s_lshl_b32 s3, s3, 2")
    e("    s_lshr_b32 s15, 0xcb765210, s3")
    e("    s_and_b32 s15, s15, 15")
    e("    s_and_b32 s3, s2, 2")
    e("    s_lshl_b32 s3, s3, 3")
    e("    s_add_u32 s15, s15, s3")
    e("    s_lshr_b32 s40, s2, 3")
    if rot:
        e("    s_mov_b32 s41, s40")
    elif split:
        e("    s_cmp_lt_u32 s40, %d" % split)
        e("    s_cselect_b32 s41, %d, %d" % (split, 32 - split))
        e("    s_cselect_b32 s3, 0, %d" % (7 * split))
        e("    s_add_u32 s40, s40, s3")
    else:
        e("    s_mov_b32 s41, 32")
    e("    s_mul_i32 s33, s14, %d" % WAVE)
    e("    s_and_b32 s74, s14, 1")
    e("    s_mul_i32 s34, s74, 9216")
    e("    s_mul_i32 s35, s14, 9216")
    e("    s_add_u32 s35, s35, %d" % WB)
    e("    s_lshr_b32 s42, s2, 2")
    e("    s_xor_b32 s42, s42, s14")
    e("    s_and_b32 s42, s42, 1")
    nst = 8 if place == "flat" else nstatic
    if place == "baked":
        e("    s_mov_b32 s70, 0x7acec0de")
        e("    s_getreg_b32 s71, hwreg(HW_REG_XCC_ID, 2, 1)")

    def item(k):
        if rot:
            e("    s_add_u32 s40, s41, %d" % ((rot * k) & 31))
            e("    s_and_b32 s40, s40, 31")
            e("    s_cmp_lt_u32 s40, %d" % split)
            e("    s_mov_b32 s3, %d" % (split * k))
            e("    s_cselect_b32 s3, s3, %d" % (7 * split + (32 - split) * k))
            e("    s_add_u32 s40, s40, s3")
        e("    s_mul_i32 s37, s40, 49152")
        par = "s42"
        if k >= nst:
            e("    s_add_u32 s3, s37, 24576")
            e("    s_lshr_b32 s3, s3, 19")
            if place == "auto":
                e("    s_lshr_b32 s72, s3, 2")
                e("    s_lshr_b32 s72, s70, s72")
                e("    s_xor_b32 s3, s3, s72")
            else:
                e("    s_lshr_b32 s3, s70, s3")
            e("    s_xor_b32 s3, s3, s71")
            e("    s_and_b32 s72, s3, 1")
            par = "s72"
        e("    s_lshl_b32 s3, %s, 3" % par)
        e("    s_xor_b32 s3, s3, s15")
        e("    s_mul_i32 s3, s3, 1536")
        e("    s_add_u32 s%d, s37, s3" % (sP + k))
        e("    s_lshl_b32 s37, s37, 1")
        e("    s_add_u32 s3, s37, s3")
        e("    s_lshl_b32 s%d, s3, 1" % (sC + k))
        if not rot:
            e("    s_add_u32 s40, s40, s41")

    item(0)
    if pts[0] > 8:
        item(1)
    e("    s_mov_b32 s18, %d" % C_BYTES)
    e("    s_mov_b32 s19, 0x20000")
    e("    s_mov_b32 s22, %d" % P_BYTES)
    e("    s_mov_b32 s23, 0x20000")
    e("    s_mov_b32 s26, %d" % W_BYTES)
    e("    s_mov_b32 s27, 0x20000")
    e("    s_mov_b32 s30, %d" % C_BYTES)
    e("    s_mov_b32 s31, 0x20000")
    e("    s_mov_b32 s94, %d" % (5 * tstride + 4))
    e("    s_mov_b32 s95, 0x20000")
    e("    s_mov_b32 s75, 0")
    e("    v_xor_b32 v%d, 32, v%d" % (vSw2, vLane16))
    e("    v_and_b32 v%d, 32, v0" % vSw1)
    e("    v_xor_b32 v%d, v%d, v%d" % (vSw1, vSw1, vLane16))
    e("    s_sub_u32 s68, s2, %d" % slots)
    e("    s_cmp_lt_u32 s14, 2")
    e("    s_waitcnt lgkmcnt(0)")
    e("    s_cselect_b64 s[24:25], s[8:9], s[10:11]")
    e("    s_mov_b64 s[20:21], s[6:7]")
    e("    s_mov_b64 s[16:17], s[4:5]")
    e("    s_mov_b64 s[28:29], s[96:97]")
    e("    s_mov_b64 s[92:93], s[98:99]")

    def op_w(t):
        g0 = (t // 4) * 4096
        return ("w", "w%d" % g0, ["    s_add_u32 m0, s35, %d" % g0, "    s_add_u32 s36, s34, %d" % g0],
                ["    buffer_load_dwordx4 v%d, s[24:27], s36 offen offset:%d lds" % (vLane16, 1024 * (t % 4))])

    def ops_h(h):
        k, di = h >> 1, h & 1
        res = []
        if di == 0:
            pre_ = ["    s_add_u32 m0, s33, %d" % (PO + (k % NP) * 1536), "    s_nop 0"]
            res.append(("h%d" % h, "p%d" % h, pre_,
                        ["    buffer_load_dwordx4 v%d, s[20:23], s%d offen %s lds" % (vLane16, sP + k, ld)]))
            res.append(("h%d" % h, "p%d" % h, pre_,
                        ["    s_mov_b32 exec_hi, 0",
                         "    buffer_load_dwordx4 v%d, s[20:23], s%d offen offset:1024 %s lds" % (vLane16, sP + k, ld),
                         "    s_mov_b32 exec_hi, -1"]))
        so = sC + k if di == 0 else 43
        pre_ = ["    s_add_u32 m0, s33, %d" % ((h % NS) * 3072),
                "    s_nop 0" if di == 0 else "    s_add_u32 s43, s%d, 98304" % (sC + k)]
        for t, v in enumerate((vLane16, vSw1, vSw2)):
            res.append(("h%d" % h, "c%d" % h, pre_,
                        ["    buffer_load_dwordx4 v%d, s[16:19], s%d offen offset:%d %s lds" % (v, so, 1024 * t, ld)]))
        return res

    m0key = [None]

    def emit(ops):
        for tag, kk, pre_, ins in ops:
            if kk != m0key[0]:
                for x in pre_:
                    e(x)
            m0key[0] = kk
            for x in ins:
                e(x)
            vm.append(tag)

    W = [op_w(t) for t in range(9)]
    data = [o for h in range(16) for o in ops_h(h)]
    nd = [0]
    items_done = [2 if pts[0] > 8 else 1]
    M = (1 << (2 * slots)) // 3

    def ops_upto_step(h):
        h = min(h, 16)
        return 8 * (h >> 1) + 5 * (h & 1)

    def issue_one():
        k = nd[0] // 8
        if k == items_done[0]:
            if place == "auto" and k == nst:
                table_use()
            item(k)
            items_done[0] += 1
        emit([data[nd[0]]])
        nd[0] += 1

    def issue_to(n):
        while nd[0] < n:
            issue_one()

    def table_load():
        e("    v_mul_u32_u24 v%d, %d, v0" % (vA, tstride))
        e("    buffer_load_dword v%d, v%d, s[92:95], 0 offen" % (vD, vA))
        vm.append("tab")

    def table_use():
        wait_vm("tab")
        e("    s_mov_b32 s68, 0x%x" % M)
        e("    s_mov_b32 s69, 0")
        e("L_tab:")
        e("    v_lshrrev_b32 v%d, 1, v%d" % (vT, vD))
        e("    v_or_b32 v%d, v%d, v%d" % (vU, vT, vD))
        e("    v_and_b32 v%d, s68, v%d" % (vU, vU))
        e("    v_cmp_ne_u32 vcc, s68, v%d" % vU)
        e("    v_bfi_b32 v%d, v%d, 0, v%d" % (vJ, vT, vD))
        e("    v_bfi_b32 v%d, v%d, 0, v%d" % (vG, vD, vT))
        e("    s_and_b32 s3, vcc_lo, 63")
        e("    s_cbranch_scc1 L_tab_slow")
        e("    v_and_b32 v%d, s68, v%d" % (vJ, vJ))
        e("    v_and_b32 v%d, s68, v%d" % (vG, vG))
        e("    v_bcnt_u32_b32 v%d, v%d, 0" % (vJ, vJ))
        e("    v_bcnt_u32_b32 v%d, v%d, 0" % (vG, vG))
        e("    v_readfirstlane_b32 s3, v%d" % vD)
        e("    v_cmp_gt_u32 vcc, v%d, v%d" % (vG, vJ))
        e("    s_bfe_u32 s71, s3, 0x10001")
        e("    s_bfe_u32 s37, s3, 0x10003")
        e("    s_lshl_b32 s37, s37, 1")
        e("    s_add_u32 s71, s71, s37")
        e("    s_bfe_u32 s37, s3, 0x10005")
        e("    s_lshl_b32 s37, s37, 2")
        e("    s_add_u32 s71, s71, s37")
        e("    s_mov_b32 s70, vcc_lo")
        e("    v_cmp_eq_u32 vcc, v%d, v%d" % (vG, vJ))
        e("    s_add_u32 s71, s71, s2")
        e("    s_bfe_u32 s71, s71, 0x10002")
        if dbgout:
            e("    s_lshl_b32 s58, s69, 8")
            e("    s_or_b32 s58, s58, s70")
            e("    s_mov_b32 s59, s71")
        e("    s_cmp_lg_u32 s74, 0")
        e("    s_cselect_b32 s3, vcc_lo, 0")
        e("    s_or_b32 s70, s70, s3")

    def table_slow():
        e("L_tab_slow:")
        e("    s_add_u32 s69, s69, 1")
        e("    s_cmp_le_u32 s69, %d" % tries)
        e("    s_cbranch_scc1 L_tab_reload")
        e("    v_xor_b32 v%d, s68, v%d" % (vU, vU))
        e("    v_lshl_add_u32 v%d, v%d, 1, v%d" % (vU, vU, vU))
        e("    v_or_b32 v%d, v%d, v%d" % (vJ, vU, vD))
        e("    v_mov_b32 v%d, v%d" % (vG, vD))
        e("    s_mov_b32 exec_lo, s3")
        e("    s_mov_b32 exec_hi, 0")
        e("    buffer_atomic_cmpswap v[%d:%d], v%d, s[92:95], 0 offen sc1" % (vJ, vG, vA))
        e("    s_mov_b64 exec, -1")
        e("    s_waitcnt vmcnt(0)")
        e("L_tab_reload:")
        e("    buffer_load_dword v%d, v%d, s[92:95], 0 offen sc0 sc1" % (vD, vA))
        e("    s_waitcnt vmcnt(0)")
        e("    s_branch L_tab")

    def prober_path():
        lgs = slots.bit_length() - 1
        e("L_prober:")
        e("    s_cmp_lg_u32 s14, 0")
        e("    s_cbranch_scc1 L_pw")
        e("    s_getreg_b32 s69, hwreg(HW_REG_XCC_ID, 0, 3)")
        e("    s_lshr_b32 s70, s2, %d                        ; segment 1..5" % lgs)
        e("    s_and_b32 s71, s2, %d                         ; slot" % (slots - 1))
        e("    s_lshr_b32 s3, s71, 1")
        e("    s_xor_b32 s72, s3, s71")
        e("    s_and_b32 s72, s72, 1")
        e("    s_lshr_b32 s3, s69, 2")
        e("    s_xor_b32 s3, s3, s72")
        e("    s_xor_b32 s3, s3, s71")
        e("    s_and_b32 s3, s3, 1")
        e("    s_lshl_b32 s3, s3, 13")
        e("    s_and_b32 s37, s71, 3")
        e("    s_lshl_b32 s68, s70, 2")
        e("    s_add_u32 s68, s68, s37")
        e("    s_lshl_b32 s68, s68, 21")
        e("    s_mul_i32 s37, s71, %d" % (98304 + 16384 + 256))
        e("    s_add_u32 s68, s68, s37")
        e("    s_add_u32 s68, s68, s3")
        e("    s_xor_b32 s37, s68, 8192")
        e("    s_mov_b64 exec, 1")
        e("    buffer_load_dword v%d, v0, s[16:19], s68 offen nt" % vD)
        e("    buffer_load_dword v%d, v0, s[16:19], s37 offen nt" % vD)
        e("    s_mov_b64 exec, -1")
        e("L_pw:")
        e("    s_mov_b32 s75, 1")
        e("    s_barrier")
        m0key[0] = None
        emit(W)
        e("    s_cmp_lg_u32 s14, 0")
        e("    s_cbranch_scc1 L_pd")
        e("    s_sub_u32 s69, s69, s2")
        e("    s_lshl_b32 s3, s69, 1")
        e("    s_and_b32 s3, s3, 4")
        e("    s_lshl_b32 s37, s69, 2")
        e("    s_and_b32 s37, s37, 16")
        e("    s_and_b32 s69, s69, 1")
        e("    s_or_b32 s69, s69, s3")
        e("    s_or_b32 s69, s69, s37")
        e("    s_add_u32 s69, s69, 0x%x" % (((3 * M) & ~63) + 21))
        e("    s_mul_i32 s70, s70, %d" % tstride)
        e("    s_lshl_b32 s71, s71, 1")
        e("    s_add_u32 s72, s72, 1")
        e("    v_mov_b32 v%d, 0" % vA)
        e("    v_mov_b32 v%d, s69" % vB)
        e("    v_writelane_b32 v%d, s70, 0" % vA)
        e("    s_waitcnt vmcnt(10)")
        e("    s_getreg_b32 s3, hwreg(HW_REG_IB_STS, 0, 4)")
        e("    s_cmp_eq_u32 s3, 10")
        e("    s_cselect_b32 s3, s72, 3")
        e("    s_lshl_b32 s3, s3, s71")
        if force:
            e("    s_mov_b32 s3, 0")
        e("    s_cmp_eq_u32 s2, %d" % slots)
        e("    v_writelane_b32 v%d, s3, 0" % vB)
        e("    s_cselect_b64 exec, 3, 1")
        e("    buffer_atomic_or v%d, v%d, s[92:95], 0 offen sc1" % (vB, vA))
        e("    s_mov_b32 s75, 2")
        e("    s_mov_b64 exec, -1")
        e("L_pd:")
        e("    s_barrier")
        emit(data[:pts[0]])

    if place == "auto":
        e("    s_cmp_lt_u32 s68, %d" % (5 * slots))
        e("    s_cbranch_scc1 L_prober")
    wi = 0
    for ch in pat:
        if ch == "w":
            emit([W[wi]]); wi += 1
        else:
            issue_one()
    assert wi == 9 and nd[0] <= pts[0]
    issue_to(pts[0])
    if place == "auto":
        e("    s_branch L_started")
        keep = list(vm)
        prober_path()
        vm[:] = keep
        e("L_started:")
        m0key[0] = None
    if tlb:
        e("    s_lshr_b32 s3, s2, 3")
        e("    s_lshl_b32 s3, s3, 21")
        e("    s_lshl_b32 s37, s2, 8")
        e("    s_add_u32 s3, s3, s37")
        e("    s_cmp_eq_u32 s14, 1")
        e("    s_cselect_b32 s3, s3, 0x7ff00000")
        e("    s_mov_b64 exec, 1")
        for srd in ("s[28:31]", "s[16:19]", "s[20:23]")[:tlb]:
            e("    buffer_load_dword v22, v0, %s, s3 offen nt" % srd)
            vm.append("tlb")
        e("    s_mov_b64 exec, -1")
    wtail = count_after(vm, "w")
    vm[:] = [t for t in vm if t != "w"]

    e("    v_and_b32 v%d, 15, v0                        ; j" % vJ)
    e("    v_lshrrev_b32 v%d, 4, v0                     ; g" % vG)
    e("    v_lshrrev_b32 v%d, 2, v%d" % (vT, vJ))
    e("    v_and_b32 v%d, 3, v%d" % (vU, vJ))
    e("    v_lshl_add_u32 v%d, v%d, 3, v%d" % (vWt, vG, vT))
    e("    v_mul_u32_u24 v%d, 192, v%d" % (vWt, vWt))
    e("    v_lshl_add_u32 v%d, v%d, 4, v%d" % (vWt, vU, vWt))
    e("    v_add_u32 v%d, %d, v%d" % (vWt, WB + W_BYTES, vWt))
    e("    s_lshr_b32 s73, s14, 1")
    e("    s_lshl_b32 s3, s73, 3")
    e("    v_add_u32 v%d, s3, v%d" % (vWm, vWt))
    e("    s_mul_i32 s3, s74, 768")
    e("    s_add_u32 s3, s3, %d" % WB)
    e("    v_lshl_add_u32 v%d, v%d, 3, v%d" % (vWl, vT, vU))
    e("    v_mul_u32_u24 v%d, 192, v%d" % (vWl, vWl))
    e("    v_lshl_add_u32 v%d, v%d, 4, v%d" % (vWl, vG, vWl))
    e("    v_add_u32 v%d, s3, v%d" % (vWl, vWl))
    e("    v_add_u32 v%d, %d, v%d" % (vXr, XB, vLane16))
    e("    s_mul_i32 s3, s73, 3072")
    e("    s_lshl_b32 s37, s74, 3")
    e("    s_add_u32 s3, s3, s37")
    e("    v_add_u32 v%d, s3, v%d" % (vXw, vXr))
    e("    v_mul_u32_u24 v%d, 192, v%d" % (vSwr, vJ))
    e("    v_and_b32 v%d, 2, v%d" % (vU, vT))
    e("    v_xor_b32 v%d, v%d, v%d" % (vU, vU, vG))
    e("    v_lshl_add_u32 v%d, v%d, 4, v%d" % (vBrd, vU, vSwr))
    e("    v_add_u32 v%d, s33, v%d" % (vBrd, vBrd))
    e("    v_lshrrev_b32 v%d, 1, v%d" % (vT, vJ))
    e("    v_mul_u32_u24 v%d, 192, v%d" % (vPrd, vT))
    e("    v_lshl_add_u32 v%d, v%d, 4, v%d" % (vPrd, vG, vPrd))
    e("    v_add_u32 v%d, s33, v%d" % (vPrd, vPrd))
    e("    s_add_u32 s73, s33, %d" % SO)
    e("    v_and_b32 v%d, 3, v%d" % (vT, vT))
    e("    v_xor_b32 v%d, v%d, v%d" % (vT, vT, vG))
    e("    v_lshl_add_u32 v%d, v%d, 4, v%d" % (vSwr, vT, vSwr))
    e("    v_add_u32 v%d, s73, v%d" % (vSwr, vSwr))
    for t in range(3):
        r = vSrd + t
        e("    v_add_u32 v%d, %d, v0" % (r, 64 * t))
        e("    v_mul_u32_u24 v%d, 2731, v%d" % (vU, r))
        e("    v_bfe_u32 v%d, v%d, 16, 2" % (vU, vU))
        e("    v_xor_b32 v%d, v%d, v%d" % (r, r, vU))
        e("    v_lshl_add_u32 v%d, v%d, 4, s73" % (r, r))

    if place == "auto":
        e("    s_waitcnt vmcnt(%d)" % (pts[0] + 1 + tlb))
        e("    s_cmp_eq_u32 s75, 2")
        e("    s_cbranch_scc1 L_wok")
        e("    s_waitcnt vmcnt(%d)" % (pts[0] + tlb))
        e("    s_cmp_eq_u32 s75, 1")
        e("    s_cbranch_scc1 L_wok")
    e("    s_waitcnt vmcnt(%d)" % wtail)
    e("L_wok:")
    e("    s_barrier")
    stp(2)

    def tr_off(mt, s, hh):
        return (32 * s + 4 * hh) * 192 + 64 * (mt >> 1) + 8 * (mt & 1)

    def mine(i):
        for s in range(3):
            for hh in range(2):
                r = vW2t + (i * 3 + s) * 4 + 2 * hh
                ds("ds_read_b64_tr_b16 v[%d:%d], v%d offset:%d" % (r, r + 1, vWm, tr_off(2 * i, s, hh)), "m%d" % i)

    full = [(mt, s, hh) for mt in range(6) for s in range(3) for hh in range(2)]

    def w2_reads(n):
        for _ in range(min(n, len(full))):
            mt, s, hh = full.pop(0)
            r = aW2 + (mt * 3 + s) * 4 + 2 * hh
            ds("ds_read_b64_tr_b16 a[%d:%d], v%d offset:%d" % (r, r + 1, vWt, tr_off(mt, s, hh)), "w2")

    mine(0)
    for s in range(3):
        for ks in range(3):
            ds("ds_read_b128 %s, v%d offset:%d" % (q(vWlF + (s * 3 + ks) * 4), vWl, 32 * s * 192 + 64 * ks), "l%d" % s)
    issue_to(pts[1])
    mine(1)
    mine(2)

    def wf_out(i, s):
        d = vWa + (i * 3 + s) * 4
        o = vWo + (i * 3 + s) * 2
        e("    v_cvt_pk_bf16_f32 v%d, v%d, v%d" % (o, d, d + 1))
        e("    v_cvt_pk_bf16_f32 v%d, v%d, v%d" % (o + 1, d + 2, d + 3))
        ds("ds_write_b64 v%d, v[%d:%d] offset:%d" % (vXw, o, o + 1, 1024 * (6 * i + s)), "x")

    for i in range(3):
        for s in range(3):
            wait_lg("l%d" % s)
            wait_lg("m%d" % i)
            for ks in range(3):
                d = vWa + (i * 3 + s) * 4
                e("    v_mfma_f32_16x16x32_bf16 %s, %s, %s, %s" % (
                    q(d), q(vWlF + (s * 3 + ks) * 4), q(vW2t + (i * 3 + ks) * 4), "0" if ks == 0 else q(d)))
                if i:
                    w2_reads(1)
            if i:
                wf_out(i - 1, s)
        issue_to(pts[2 + i])
    w2_reads(6)
    for s in range(3):
        wf_out(2, s)
    issue_to(pts[5])
    wait_lg("x")
    e("    s_barrier")
    stp(3)
    w2_reads(99)
    assert max(pts) <= ops_upto_step(NS)

    def wf_read(f):
        ds("ds_read_b128 %s, v%d offset:%d" % (q(aWf + 4 * f, "a"), vXr, 1024 * f), "wf")

    def frag_reads(h):
        k = h >> 1
        wait_vm("h%d" % h)
        if h in (0, 7, 15) and not (dbgout and h == 7):
            stp({0: 4, 7: 5, 15: 6}[h])
        if h & 1 == 0:
            for s in range(3):
                ds("ds_read_b128 %s, v%d offset:%d" % (q(vP + 4 * s), vPrd, PO + (k % NP) * 1536 + 64 * s), "p%d" % k)
        for s in range(3):
            ds("ds_read_b128 %s, v%d offset:%d" % (q(vB + 12 * (h & 1) + 4 * s), vBrd, (h % NS) * 3072 + 64 * s), "b%d" % h)

    def store_ops(h):
        def one(t):
            so = sC + (h >> 1)
            if h & 1:
                if t == 0:
                    e("    s_add_u32 s32, s%d, 98304" % so)
                so = 32
            wait_lg("r%d_%d" % (h, t))
            e("    buffer_store_dwordx4 %s, v%d, s[28:31], s%d offen offset:%d %s" % (
                q(vR + 4 * t), vLane16, so, 1024 * t, st if h < wbfrom else st2))
            vm.append("o%d" % h)
        return [lambda t=t: one(t) for t in range(3)]

    def mfma_block(ms, fill):
        for n, m in enumerate(ms, 1):
            e("    " + m)
            for f in fill.get(n, []):
                f()

    def cvt_write(h, sp):
        o, a = vO + 4 * sp, vAcc + 8 * sp
        r = [lambda i=i: e("    v_cvt_pk_bf16_f32 v%d, v%d, v%d" % (o + i, a + 2 * i, a + 2 * i + 1)) for i in range(4)]
        r.append(lambda: ds("ds_write_b128 v%d, %s offset:%d" % (vSwr, q(o), 64 * sp), "s%d" % h))
        return r

    stores = []
    frag_reads(0)
    for f in range(6):
        wf_read(f)
    issue_to(pts[6])
    have = True
    for h in range(16):
        k, di = h >> 1, h & 1
        if not have:
            for f in stores:
                f()
            stores = []
        if bar and h and h % bar == 0:
            e("    s_barrier")
        if place == "auto" and h == rdstep:
            table_load()
        fs(4 * h)
        if not have:
            frag_reads(h)
        Dh = int(taper[h])
        assert Dh < NS
        target = ops_upto_step(h + Dh + 1)
        if not have:
            issue_to(target)
        fs(4 * h + 1)
        if di == 0:
            wait_lg("w2")
            wait_lg("p%d" % k)
            fill = {}
            for n, f in enumerate(stores):
                fill.setdefault(stpos + 2 * n, []).append(f)
            stores = []
            if h == 0:
                for f in range(6, 18):
                    fill.setdefault(f - 5, []).append(lambda f=f: wf_read(f))
            mfma_block(["v_mfma_f32_16x16x32_bf16 %s, %s, %s, %s" % (
                q(vQ + 4 * mt), q(aW2 + (mt * 3 + s) * 4, "a"), q(vP + 4 * s), "0" if s == 0 else q(vQ + 4 * mt))
                for mt in range(6) for s in range(3)], fill)
        wait_lg("b%d" % h)
        wait_lg("wf")
        fill = {}
        first = 1
        for n, f in enumerate(stores):
            fill.setdefault(stpos + n, []).append(f)
            first = stpos + n + 1
        stores = []
        nxt_have = h < 15 and nd[0] >= ops_upto_step(h + 2) and int(taper[h]) >= hoist
        if nxt_have:
            fill.setdefault(min(first, 12), []).append(lambda: frag_reads(h + 1))
        for n in range(max(0, target - nd[0])):
            fill.setdefault(min(first + n, 12) if first > 1 else n + 2, []).append(issue_one)
        for n, f in enumerate(cvt_write(h, 0)):
            fill.setdefault(13 + n, []).append(f)
        mfma_block(["v_mfma_f32_16x16x32_bf16 %s, %s, %s, %s" % (
            q(vAcc + 4 * mt), q(aWf + (mt * 3 + s) * 4, "a"), q(vB + 12 * di + 4 * s),
            q(vQ + 4 * mt) if s == 0 else q(vAcc + 4 * mt)) for mt in range(6) for s in range(3)], fill)
        for f in cvt_write(h, 1):
            f()
        e("    s_nop 0")
        for f in cvt_write(h, 2):
            f()
        for t in range(3):
            ds("ds_read_b128 %s, v%d" % (q(vR + 4 * t), vSrd + t), "r%d_%d" % (h, t))
        stores = store_ops(h)
        have = nxt_have
        fs(4 * h + 3)
    for f in stores:
        f()

    if stamp:
        e("    s_waitcnt vmcnt(0)")
        e("    s_memtime s[46:47]")
        stp(7)
        e("    s_sub_u32 s50, s46, s44")
        e("    s_mov_b32 s51, 0x7000")
        e("    s_mov_b32 s66, 0x1000000")
        e("    s_mov_b32 s67, 0x20000")
        e("    s_lshl_b32 s3, s2, 2")
        e("    s_add_u32 s3, s3, s14")
        e("    s_lshl_b32 s3, s3, 6")
        for i in range(16):
            e("    v_mov_b32 v%d, s%d" % (32 + i, 48 + i))
        if fine:
            e("    s_lshl_b32 s37, s3, 2")
            e("    s_add_u32 s37, s37, 0x800000")
            e("    v_lshlrev_b32 v1, 2, v0")
            e("    buffer_store_dword v255, v1, s[64:67], s37 offen")
        e("    v_mov_b32 v1, 0")
        e("    s_mov_b64 exec, 1")
        for i in range(4):
            e("    buffer_store_dwordx4 v[%d:%d], v1, s[64:67], s3 offen offset:%d" % (32 + 4 * i, 35 + 4 * i, 16 * i))
    e("L_end:")
    e("    s_endpgm")
    if place == "auto":
        table_slow()

    if nomfma:
        L = [x for x in L if "v_mfma" not in x]
    out = HEADER + ("; STAMP build\n" if stamp else "")
    out += "; @launch grid=(256,1,1) block=(256,1,1) lds=%d\n" % LDS
    out += '.amdgcn_target "amdgcn-amd-amdhsa--gfx950"\n.text\n.globl %s_kernel\n.p2align 8\n.type %s_kernel,@function\n' % (NAME, NAME)
    out += "\n".join(L) + "\n"
    out += """.section .rodata,"a"
.p2align 6
.amdhsa_kernel %s_kernel
  .amdhsa_next_free_vgpr %d
  .amdhsa_next_free_sgpr 100
  .amdhsa_accum_offset %d
  .amdhsa_group_segment_fixed_size 0
  .amdhsa_kernarg_size 56
  .amdhsa_user_sgpr_count 2
  .amdhsa_user_sgpr_kernarg_segment_ptr 1
  .amdhsa_system_sgpr_workgroup_id_x 1
.end_amdhsa_kernel
""" % (NAME, NV + 144, NV)
    return out


if __name__ == "__main__":
    import inspect
    ap = argparse.ArgumentParser()
    ap.add_argument("-o", default="cdna_kernels/%s.s" % NAME)
    for k, p in inspect.signature(gen).parameters.items():
        if isinstance(p.default, bool):
            ap.add_argument("--" + k, action="store_true")
        else:
            ap.add_argument("--" + k, type=type(p.default), default=p.default)
    a = vars(ap.parse_args())
    o = a.pop("o")
    open(o, "w").write(gen(**a))
```

```python
import argparse

NAME = "standalone__detection_seg_fpn_lateral__vision"
HEADER = open("cdna_kernels/%s.s.ref" % NAME).read().split("; Override launch")[0]
C_BYTES, P_BYTES, W_BYTES = 50331648, 12582912, 18432


def gen(ld="nt", st="sc0 sc1", st2="", pat="wdwwdwwdwwdww", pts="8,13,13,16,16,16,21", taper="4444444333222111",
        place="auto", nstatic=3, split=21, rot=0, bar=4, wbfrom=14, slots=8, rdstep=0, tries=6, tstride=48,
        hoist=3, stpos=7, tlb=0, stamp=False, fine=False, dbgout=False, force=False, nomfma=False, diag=''):
    L = []
    e = L.append
    pts = [int(x) for x in pts.split(",")]

    NS, NP = 6, 3
    PO = NS * 3072
    SO = PO + NP * 1536
    WAVE = SO + 3072
    XB = 4 * WAVE
    WB = XB + W_BYTES
    LDS = WB + 2 * W_BYTES
    assert LDS <= 163840, LDS

    aWf, aW2 = 0, 72
    vLane16, vSw1, vSw2, vBrd, vPrd, vSwr, vSrd = 1, 2, 3, 4, 5, 6, 8
    vWt, vWl, vXw, vXr, vT, vU, vJ, vG, vA, vD = 11, 12, 13, 14, 15, 16, 18, 19, 20, 21
    vWm = 17
    vB, vP, vQ, vAcc, vO, vR = 24, 48, 60, 108, 132, 144
    vWlF, vW2t, vWa, vWo = 156, 60, 108, 192
    NV = 256 if fine else 212
    sC, sP = 76, 84

    vm, lg = [], []

    def q(r, f="v"):
        return "%s[%d:%d]" % (f, r, r + 3)

    def count_after(lst, tag):
        idx = [i for i, t in enumerate(lst) if t == tag]
        return None if not idx else len(lst) - 1 - idx[-1]

    def wait_vm(tag):
        n = count_after(vm, tag)
        if n is not None:
            assert n < 63
            e("    s_waitcnt vmcnt(%d)" % n)
            del vm[:len(vm) - n]

    def wait_lg(tag):
        n = count_after(lg, tag)
        if n is not None:
            n = min(n, 14)
            e("    s_waitcnt lgkmcnt(%d)" % n)
            del lg[:len(lg) - n]

    def ds(text, tag):
        e("    " + text)
        lg.append(tag)

    def stp(i):
        if stamp:
            e("    s_memrealtime s[%d:%d]" % (48 + 2 * i, 49 + 2 * i))
            e("    s_waitcnt lgkmcnt(0)")
            del lg[:]

    def fs(i):
        if fine:
            e("    s_memrealtime s[38:39]")
            e("    s_waitcnt lgkmcnt(0)")
            e("    v_writelane_b32 v255, s38, %d" % i)
            del lg[:]

    e("%s_kernel:" % NAME)
    e("    s_cmp_ge_u32 s2, 256")
    e("    s_cbranch_scc1 L_end")
    if stamp:
        e("    s_memrealtime s[48:49]")
        e("    s_memtime s[44:45]")
        e("    s_load_dwordx2 s[64:65], s[0:1], 48")
    e("    s_load_dwordx8 s[4:11], s[0:1], 0")
    e("    s_load_dwordx4 s[96:99], s[0:1], 32")
    e("    v_readfirstlane_b32 s14, v0")
    e("    v_and_b32 v0, 63, v0")
    e("    v_lshlrev_b32 v%d, 4, v0" % vLane16)
    e("    s_lshr_b32 s14, s14, 6")
    e("    s_and_b32 s3, s2, 1")
    e("    s_lshl_b32 s3, s3, 2")
    e("    s_add_u32 s3, s3, s14")
    e("    s_lshl_b32 s3, s3, 2")
    e("    s_lshr_b32 s15, 0xcb765210, s3")
    e("    s_and_b32 s15, s15, 15")
    e("    s_and_b32 s3, s2, 2")
    e("    s_lshl_b32 s3, s3, 3")
    e("    s_add_u32 s15, s15, s3")
    e("    s_lshr_b32 s40, s2, 3")
    if rot:
        e("    s_mov_b32 s41, s40")
    elif split:
        e("    s_cmp_lt_u32 s40, %d" % split)
        e("    s_cselect_b32 s41, %d, %d" % (split, 32 - split))
        e("    s_cselect_b32 s3, 0, %d" % (7 * split))
        e("    s_add_u32 s40, s40, s3")
    else:
        e("    s_mov_b32 s41, 32")
    e("    s_mul_i32 s33, s14, %d" % WAVE)
    e("    s_and_b32 s74, s14, 1")
    e("    s_mul_i32 s34, s74, 9216")
    e("    s_mul_i32 s35, s14, 9216")
    e("    s_add_u32 s35, s35, %d" % WB)
    e("    s_lshr_b32 s42, s2, 2")
    e("    s_xor_b32 s42, s42, s14")
    e("    s_and_b32 s42, s42, 1")
    nst = 8 if place == "flat" else nstatic
    if place == "baked":
        e("    s_mov_b32 s70, 0x7acec0de")
        e("    s_getreg_b32 s71, hwreg(HW_REG_XCC_ID, 2, 1)")

    def item(k):
        if rot:
            e("    s_add_u32 s40, s41, %d" % ((rot * k) & 31))
            e("    s_and_b32 s40, s40, 31")
            e("    s_cmp_lt_u32 s40, %d" % split)
            e("    s_mov_b32 s3, %d" % (split * k))
            e("    s_cselect_b32 s3, s3, %d" % (7 * split + (32 - split) * k))
            e("    s_add_u32 s40, s40, s3")
        e("    s_mul_i32 s37, s40, 49152")
        par = "s42"
        if k >= nst:
            e("    s_add_u32 s3, s37, 24576")
            e("    s_lshr_b32 s3, s3, 19")
            if place == "auto":
                e("    s_lshr_b32 s72, s3, 2")
                e("    s_lshr_b32 s72, s70, s72")
                e("    s_xor_b32 s3, s3, s72")
            else:
                e("    s_lshr_b32 s3, s70, s3")
            e("    s_xor_b32 s3, s3, s71")
            e("    s_and_b32 s72, s3, 1")
            par = "s72"
        e("    s_lshl_b32 s3, %s, 3" % par)
        e("    s_xor_b32 s3, s3, s15")
        e("    s_mul_i32 s3, s3, 1536")
        e("    s_add_u32 s%d, s37, s3" % (sP + k))
        e("    s_lshl_b32 s37, s37, 1")
        e("    s_add_u32 s3, s37, s3")
        e("    s_lshl_b32 s%d, s3, 1" % (sC + k))
        if not rot:
            e("    s_add_u32 s40, s40, s41")

    item(0)
    if pts[0] > 8:
        item(1)
    e("    s_mov_b32 s18, %d" % C_BYTES)
    e("    s_mov_b32 s19, 0x20000")
    e("    s_mov_b32 s22, %d" % P_BYTES)
    e("    s_mov_b32 s23, 0x20000")
    e("    s_mov_b32 s26, %d" % W_BYTES)
    e("    s_mov_b32 s27, 0x20000")
    e("    s_mov_b32 s30, %d" % C_BYTES)
    e("    s_mov_b32 s31, 0x20000")
    e("    s_mov_b32 s94, %d" % (5 * tstride + 4))
    e("    s_mov_b32 s95, 0x20000")
    e("    s_mov_b32 s75, 0")
    e("    v_xor_b32 v%d, 32, v%d" % (vSw2, vLane16))
    e("    v_and_b32 v%d, 32, v0" % vSw1)
    e("    v_xor_b32 v%d, v%d, v%d" % (vSw1, vSw1, vLane16))
    e("    s_sub_u32 s68, s2, %d" % slots)
    e("    s_cmp_lt_u32 s14, 2")
    e("    s_waitcnt lgkmcnt(0)")
    e("    s_cselect_b64 s[24:25], s[8:9], s[10:11]")
    e("    s_mov_b64 s[20:21], s[6:7]")
    e("    s_mov_b64 s[16:17], s[4:5]")
    e("    s_mov_b64 s[28:29], s[96:97]")
    e("    s_mov_b64 s[92:93], s[98:99]")

    def op_w(t):
        g0 = (t // 4) * 4096
        return ("w", "w%d" % g0, ["    s_add_u32 m0, s35, %d" % g0, "    s_add_u32 s36, s34, %d" % g0],
                ["    buffer_load_dwordx4 v%d, s[24:27], s36 offen offset:%d lds" % (vLane16, 1024 * (t % 4))])

    def ops_h(h):
        k, di = h >> 1, h & 1
        res = []
        if di == 0:
            pre_ = ["    s_add_u32 m0, s33, %d" % (PO + (k % NP) * 1536), "    s_nop 0"]
            res.append(("h%d" % h, "p%d" % h, pre_,
                        ["    buffer_load_dwordx4 v%d, s[20:23], s%d offen %s lds" % (vLane16, sP + k, ld)]))
            res.append(("h%d" % h, "p%d" % h, pre_,
                        ["    s_mov_b32 exec_hi, 0",
                         "    buffer_load_dwordx4 v%d, s[20:23], s%d offen offset:1024 %s lds" % (vLane16, sP + k, ld),
                         "    s_mov_b32 exec_hi, -1"]))
        so = sC + k if di == 0 else 43
        pre_ = ["    s_add_u32 m0, s33, %d" % ((h % NS) * 3072),
                "    s_nop 0" if di == 0 else "    s_add_u32 s43, s%d, 98304" % (sC + k)]
        for t, v in enumerate((vLane16, vSw1, vSw2)):
            res.append(("h%d" % h, "c%d" % h, pre_,
                        ["    buffer_load_dwordx4 v%d, s[16:19], s%d offen offset:%d %s lds" % (v, so, 1024 * t, ld)]))
        return res

    m0key = [None]

    def emit(ops):
        for tag, kk, pre_, ins in ops:
            if kk != m0key[0]:
                for x in pre_:
                    e(x)
            m0key[0] = kk
            for x in ins:
                e(x)
            vm.append(tag)

    W = [op_w(t) for t in range(9)]
    data = [o for h in range(16) for o in ops_h(h)]
    nd = [0]
    items_done = [2 if pts[0] > 8 else 1]
    M = (1 << (2 * slots)) // 3

    def ops_upto_step(h):
        h = min(h, 16)
        return 8 * (h >> 1) + 5 * (h & 1)

    def issue_one():
        k = nd[0] // 8
        if k == items_done[0]:
            if place == "auto" and k == nst:
                table_use()
            item(k)
            items_done[0] += 1
        emit([data[nd[0]]])
        nd[0] += 1

    def issue_to(n):
        while nd[0] < n:
            issue_one()

    def table_load():
        e("    v_mul_u32_u24 v%d, %d, v0" % (vA, tstride))
        e("    buffer_load_dword v%d, v%d, s[92:95], 0 offen" % (vD, vA))
        vm.append("tab")

    def table_use():
        wait_vm("tab")
        e("    s_mov_b32 s68, 0x%x" % M)
        e("    s_mov_b32 s69, 0")
        e("L_tab:")
        e("    v_lshrrev_b32 v%d, 1, v%d" % (vT, vD))
        e("    v_or_b32 v%d, v%d, v%d" % (vU, vT, vD))
        e("    v_and_b32 v%d, s68, v%d" % (vU, vU))
        e("    v_cmp_ne_u32 vcc, s68, v%d" % vU)
        e("    v_bfi_b32 v%d, v%d, 0, v%d" % (vJ, vT, vD))
        e("    v_bfi_b32 v%d, v%d, 0, v%d" % (vG, vD, vT))
        e("    s_and_b32 s3, vcc_lo, 63")
        e("    s_cbranch_scc1 L_tab_slow")
        e("    v_and_b32 v%d, s68, v%d" % (vJ, vJ))
        e("    v_and_b32 v%d, s68, v%d" % (vG, vG))
        e("    v_bcnt_u32_b32 v%d, v%d, 0" % (vJ, vJ))
        e("    v_bcnt_u32_b32 v%d, v%d, 0" % (vG, vG))
        e("    v_readfirstlane_b32 s3, v%d" % vD)
        e("    v_cmp_gt_u32 vcc, v%d, v%d" % (vG, vJ))
        e("    s_bfe_u32 s71, s3, 0x10001")
        e("    s_bfe_u32 s37, s3, 0x10003")
        e("    s_lshl_b32 s37, s37, 1")
        e("    s_add_u32 s71, s71, s37")
        e("    s_bfe_u32 s37, s3, 0x10005")
        e("    s_lshl_b32 s37, s37, 2")
        e("    s_add_u32 s71, s71, s37")
        e("    s_mov_b32 s70, vcc_lo")
        e("    v_cmp_eq_u32 vcc, v%d, v%d" % (vG, vJ))
        e("    s_add_u32 s71, s71, s2")
        e("    s_bfe_u32 s71, s71, 0x10002")
        if dbgout:
            e("    s_lshl_b32 s58, s69, 8")
            e("    s_or_b32 s58, s58, s70")
            e("    s_mov_b32 s59, s71")
        e("    s_cmp_lg_u32 s74, 0")
        e("    s_cselect_b32 s3, vcc_lo, 0")
        e("    s_or_b32 s70, s70, s3")

    def table_slow():
        e("L_tab_slow:")
        e("    s_add_u32 s69, s69, 1")
        e("    s_cmp_le_u32 s69, %d" % tries)
        e("    s_cbranch_scc1 L_tab_reload")
        e("    v_xor_b32 v%d, s68, v%d" % (vU, vU))
        e("    v_lshl_add_u32 v%d, v%d, 1, v%d" % (vU, vU, vU))
        e("    v_or_b32 v%d, v%d, v%d" % (vJ, vU, vD))
        e("    v_mov_b32 v%d, v%d" % (vG, vD))
        e("    s_mov_b32 exec_lo, s3")
        e("    s_mov_b32 exec_hi, 0")
        e("    buffer_atomic_cmpswap v[%d:%d], v%d, s[92:95], 0 offen sc1" % (vJ, vG, vA))
        e("    s_mov_b64 exec, -1")
        e("    s_waitcnt vmcnt(0)")
        e("L_tab_reload:")
        e("    buffer_load_dword v%d, v%d, s[92:95], 0 offen sc0 sc1" % (vD, vA))
        e("    s_waitcnt vmcnt(0)")
        e("    s_branch L_tab")

    def prober_path():
        lgs = slots.bit_length() - 1
        e("L_prober:")
        e("    s_cmp_lg_u32 s14, 0")
        e("    s_cbranch_scc1 L_pw")
        e("    s_getreg_b32 s69, hwreg(HW_REG_XCC_ID, 0, 3)")
        e("    s_lshr_b32 s70, s2, %d                        ; segment 1..5" % lgs)
        e("    s_and_b32 s71, s2, %d                         ; slot" % (slots - 1))
        e("    s_lshr_b32 s3, s71, 1")
        e("    s_xor_b32 s72, s3, s71")
        e("    s_and_b32 s72, s72, 1                        ; phase tested by this slot")
        e("    s_lshr_b32 s3, s69, 2")
        e("    s_xor_b32 s3, s3, s72")
        e("    s_xor_b32 s3, s3, s71")
        e("    s_and_b32 s3, s3, 1")
        e("    s_lshl_b32 s3, s3, 13")
        e("    s_and_b32 s37, s71, 3")
        e("    s_lshl_b32 s68, s70, 2")
        e("    s_add_u32 s68, s68, s37")
        e("    s_lshl_b32 s68, s68, 21")
        e("    s_mul_i32 s37, s71, %d" % (98304 + 16384 + 256))
        e("    s_add_u32 s68, s68, s37")
        e("    s_add_u32 s68, s68, s3")
        e("    s_xor_b32 s37, s68, 8192")
        e("    s_mov_b64 exec, 1")
        e("    buffer_load_dword v%d, v0, s[16:19], s68 offen nt" % vD)
        e("    buffer_load_dword v%d, v0, s[16:19], s37 offen nt" % vD)
        e("    s_mov_b64 exec, -1")
        e("L_pw:")
        e("    s_mov_b32 s75, 1")
        e("    s_barrier")
        m0key[0] = None
        emit(W)
        e("    s_cmp_lg_u32 s14, 0")
        e("    s_cbranch_scc1 L_pd")
        e("    s_sub_u32 s69, s69, s2")
        e("    s_lshl_b32 s3, s69, 1")
        e("    s_and_b32 s3, s3, 4")
        e("    s_lshl_b32 s37, s69, 2")
        e("    s_and_b32 s37, s37, 16")
        e("    s_and_b32 s69, s69, 1")
        e("    s_or_b32 s69, s69, s3")
        e("    s_or_b32 s69, s69, s37")
        e("    s_add_u32 s69, s69, 0x%x" % (((3 * M) & ~63) + 21))
        e("    s_mul_i32 s70, s70, %d" % tstride)
        e("    s_lshl_b32 s71, s71, 1")
        e("    s_add_u32 s72, s72, 1")
        e("    v_mov_b32 v%d, 0" % vA)
        e("    v_mov_b32 v%d, s69" % vB)
        e("    v_writelane_b32 v%d, s70, 0" % vA)
        e("    s_waitcnt vmcnt(10)")
        e("    s_getreg_b32 s3, hwreg(HW_REG_IB_STS, 0, 4)  ; second load still in flight?")
        e("    s_cmp_eq_u32 s3, 10")
        e("    s_cselect_b32 s3, s72, 3")
        e("    s_lshl_b32 s3, s3, s71")
        if force:
            e("    s_mov_b32 s3, 0")
        e("    s_cmp_eq_u32 s2, %d" % slots)
        e("    v_writelane_b32 v%d, s3, 0" % vB)
        e("    s_cselect_b64 exec, 3, 1")
        e("    buffer_atomic_or v%d, v%d, s[92:95], 0 offen sc1" % (vB, vA))
        e("    s_mov_b32 s75, 2")
        e("    s_mov_b64 exec, -1")
        e("L_pd:")
        e("    s_barrier")
        emit(data[:pts[0]])

    if place == "auto":
        e("    s_cmp_lt_u32 s68, %d" % (5 * slots))
        e("    s_cbranch_scc1 L_prober")
    wi = 0
    for ch in pat:
        if ch == "w":
            emit([W[wi]]); wi += 1
        else:
            issue_one()
    assert wi == 9 and nd[0] <= pts[0]
    issue_to(pts[0])
    if place == "auto":
        e("    s_branch L_started")
        keep = list(vm)
        prober_path()
        vm[:] = keep
        e("L_started:")
        m0key[0] = None
    if tlb:
        e("    s_lshr_b32 s3, s2, 3")
        e("    s_lshl_b32 s3, s3, 21")
        e("    s_lshl_b32 s37, s2, 8")
        e("    s_add_u32 s3, s3, s37")
        e("    s_cmp_eq_u32 s14, 1")
        e("    s_cselect_b32 s3, s3, 0x7ff00000")
        e("    s_mov_b64 exec, 1")
        for srd in ("s[28:31]", "s[16:19]", "s[20:23]")[:tlb]:
            e("    buffer_load_dword v22, v0, %s, s3 offen nt" % srd)
            vm.append("tlb")
        e("    s_mov_b64 exec, -1")
    wtail = count_after(vm, "w")
    vm[:] = [t for t in vm if t != "w"]

    e("    v_and_b32 v%d, 15, v0                        ; j" % vJ)
    e("    v_lshrrev_b32 v%d, 4, v0                     ; g" % vG)
    e("    v_lshrrev_b32 v%d, 2, v%d" % (vT, vJ))
    e("    v_and_b32 v%d, 3, v%d" % (vU, vJ))
    e("    v_lshl_add_u32 v%d, v%d, 3, v%d" % (vWt, vG, vT))
    e("    v_mul_u32_u24 v%d, 192, v%d" % (vWt, vWt))
    e("    v_lshl_add_u32 v%d, v%d, 4, v%d" % (vWt, vU, vWt))
    e("    v_add_u32 v%d, %d, v%d" % (vWt, WB + W_BYTES, vWt))
    e("    s_lshr_b32 s73, s14, 1")
    e("    s_lshl_b32 s3, s73, 3")
    e("    v_add_u32 v%d, s3, v%d" % (vWm, vWt))
    e("    s_mul_i32 s3, s74, 768")
    e("    s_add_u32 s3, s3, %d" % WB)
    e("    v_lshl_add_u32 v%d, v%d, 3, v%d" % (vWl, vT, vU))
    e("    v_mul_u32_u24 v%d, 192, v%d" % (vWl, vWl))
    e("    v_lshl_add_u32 v%d, v%d, 4, v%d" % (vWl, vG, vWl))
    e("    v_add_u32 v%d, s3, v%d" % (vWl, vWl))
    e("    v_add_u32 v%d, %d, v%d" % (vXr, XB, vLane16))
    e("    s_mul_i32 s3, s73, 3072")
    e("    s_lshl_b32 s37, s74, 3")
    e("    s_add_u32 s3, s3, s37")
    e("    v_add_u32 v%d, s3, v%d" % (vXw, vXr))
    e("    v_mul_u32_u24 v%d, 192, v%d" % (vSwr, vJ))
    e("    v_and_b32 v%d, 2, v%d" % (vU, vT))
    e("    v_xor_b32 v%d, v%d, v%d" % (vU, vU, vG))
    e("    v_lshl_add_u32 v%d, v%d, 4, v%d" % (vBrd, vU, vSwr))
    e("    v_add_u32 v%d, s33, v%d" % (vBrd, vBrd))
    e("    v_lshrrev_b32 v%d, 1, v%d" % (vT, vJ))
    e("    v_mul_u32_u24 v%d, 192, v%d" % (vPrd, vT))
    e("    v_lshl_add_u32 v%d, v%d, 4, v%d" % (vPrd, vG, vPrd))
    e("    v_add_u32 v%d, s33, v%d" % (vPrd, vPrd))
    e("    s_add_u32 s73, s33, %d" % SO)
    e("    v_and_b32 v%d, 3, v%d" % (vT, vT))
    e("    v_xor_b32 v%d, v%d, v%d" % (vT, vT, vG))
    e("    v_lshl_add_u32 v%d, v%d, 4, v%d" % (vSwr, vT, vSwr))
    e("    v_add_u32 v%d, s73, v%d" % (vSwr, vSwr))
    for t in range(3):
        r = vSrd + t
        e("    v_add_u32 v%d, %d, v0" % (r, 64 * t))
        e("    v_mul_u32_u24 v%d, 2731, v%d" % (vU, r))
        e("    v_bfe_u32 v%d, v%d, 16, 2" % (vU, vU))
        e("    v_xor_b32 v%d, v%d, v%d" % (r, r, vU))
        e("    v_lshl_add_u32 v%d, v%d, 4, s73" % (r, r))

    if place == "auto":
        e("    s_waitcnt vmcnt(%d)" % (pts[0] + 1 + tlb))
        e("    s_cmp_eq_u32 s75, 2")
        e("    s_cbranch_scc1 L_wok")
        e("    s_waitcnt vmcnt(%d)" % (pts[0] + tlb))
        e("    s_cmp_eq_u32 s75, 1")
        e("    s_cbranch_scc1 L_wok")
    e("    s_waitcnt vmcnt(%d)" % wtail)
    e("L_wok:")
    e("    s_barrier")
    stp(2)

    def tr_off(mt, s, hh):
        return (32 * s + 4 * hh) * 192 + 64 * (mt >> 1) + 8 * (mt & 1)

    def mine(i):
        for s in range(3):
            for hh in range(2):
                r = vW2t + (i * 3 + s) * 4 + 2 * hh
                ds("ds_read_b64_tr_b16 v[%d:%d], v%d offset:%d" % (r, r + 1, vWm, tr_off(2 * i, s, hh)), "m%d" % i)

    full = [(mt, s, hh) for mt in range(6) for s in range(3) for hh in range(2)]

    def w2_reads(n):
        for _ in range(min(n, len(full))):
            mt, s, hh = full.pop(0)
            r = aW2 + (mt * 3 + s) * 4 + 2 * hh
            ds("ds_read_b64_tr_b16 a[%d:%d], v%d offset:%d" % (r, r + 1, vWt, tr_off(mt, s, hh)), "w2")

    mine(0)
    for s in range(3):
        for ks in range(3):
            ds("ds_read_b128 %s, v%d offset:%d" % (q(vWlF + (s * 3 + ks) * 4), vWl, 32 * s * 192 + 64 * ks), "l%d" % s)
    issue_to(pts[1])
    mine(1)
    mine(2)

    def wf_out(i, s):
        d = vWa + (i * 3 + s) * 4
        o = vWo + (i * 3 + s) * 2
        e("    v_cvt_pk_bf16_f32 v%d, v%d, v%d" % (o, d, d + 1))
        e("    v_cvt_pk_bf16_f32 v%d, v%d, v%d" % (o + 1, d + 2, d + 3))
        ds("ds_write_b64 v%d, v[%d:%d] offset:%d" % (vXw, o, o + 1, 1024 * (6 * i + s)), "x")

    for i in range(3):
        for s in range(3):
            wait_lg("l%d" % s)
            wait_lg("m%d" % i)
            for ks in range(3):
                d = vWa + (i * 3 + s) * 4
                e("    v_mfma_f32_16x16x32_bf16 %s, %s, %s, %s" % (
                    q(d), q(vWlF + (s * 3 + ks) * 4), q(vW2t + (i * 3 + ks) * 4), "0" if ks == 0 else q(d)))
                if i:
                    w2_reads(1)
            if i:
                wf_out(i - 1, s)
        issue_to(pts[2 + i])
    w2_reads(6)
    for s in range(3):
        wf_out(2, s)
    issue_to(pts[5])
    wait_lg("x")
    e("    s_barrier")
    stp(3)
    w2_reads(99)
    assert max(pts) <= ops_upto_step(NS)

    def wf_read(f):
        ds("ds_read_b128 %s, v%d offset:%d" % (q(aWf + 4 * f, "a"), vXr, 1024 * f), "wf")

    def frag_reads(h):
        k = h >> 1
        wait_vm("h%d" % h)
        if h in (0, 7, 15) and not (dbgout and h == 7):
            stp({0: 4, 7: 5, 15: 6}[h])
        if h & 1 == 0:
            for s in range(3):
                ds("ds_read_b128 %s, v%d offset:%d" % (q(vP + 4 * s), vPrd, PO + (k % NP) * 1536 + 64 * s), "p%d" % k)
        for s in range(3):
            ds("ds_read_b128 %s, v%d offset:%d" % (q(vB + 12 * (h & 1) + 4 * s), vBrd, (h % NS) * 3072 + 64 * s), "b%d" % h)

    def store_ops(h):
        def one(t):
            so = sC + (h >> 1)
            if h & 1:
                if t == 0:
                    e("    s_add_u32 s32, s%d, 98304" % so)
                so = 32
            wait_lg("r%d_%d" % (h, t))
            e("    buffer_store_dwordx4 %s, v%d, s[28:31], s%d offen offset:%d %s" % (
                q(vR + 4 * t), vLane16, so, 1024 * t, st if h < wbfrom else st2))
            vm.append("o%d" % h)
        return [lambda t=t: one(t) for t in range(3)]

    def mfma_block(ms, fill):
        for n, m in enumerate(ms, 1):
            e("    " + m)
            for f in fill.get(n, []):
                f()

    def cvt_write(h, sp):
        o, a = vO + 4 * sp, vAcc + 8 * sp
        r = [lambda i=i: e("    v_cvt_pk_bf16_f32 v%d, v%d, v%d" % (o + i, a + 2 * i, a + 2 * i + 1)) for i in range(4)]
        r.append(lambda: ds("ds_write_b128 v%d, %s offset:%d" % (vSwr, q(o), 64 * sp), "s%d" % h))
        return r

    stores = []
    frag_reads(0)
    for f in range(6):
        wf_read(f)
    issue_to(pts[6])
    have = True
    for h in range(16):
        k, di = h >> 1, h & 1
        if not have:
            for f in stores:
                f()
            stores = []
        if bar and h and h % bar == 0:
            e("    s_barrier")
        if place == "auto" and h == rdstep:
            table_load()
        fs(4 * h)
        if not have:
            frag_reads(h)
        Dh = int(taper[h])
        assert Dh < NS
        target = ops_upto_step(h + Dh + 1)
        if not have:
            issue_to(target)
        fs(4 * h + 1)
        if di == 0:
            wait_lg("w2")
            wait_lg("p%d" % k)
            fill = {}
            for n, f in enumerate(stores):
                fill.setdefault(stpos + 2 * n, []).append(f)
            stores = []
            if h == 0:
                for f in range(6, 18):
                    fill.setdefault(f - 5, []).append(lambda f=f: wf_read(f))
            mfma_block(["v_mfma_f32_16x16x32_bf16 %s, %s, %s, %s" % (
                q(vQ + 4 * mt), q(aW2 + (mt * 3 + s) * 4, "a"), q(vP + 4 * s), "0" if s == 0 else q(vQ + 4 * mt))
                for mt in range(6) for s in range(3)], fill)
        wait_lg("b%d" % h)
        wait_lg("wf")
        fill = {}
        first = 1
        for n, f in enumerate(stores):
            fill.setdefault(stpos + n, []).append(f)
            first = stpos + n + 1
        stores = []
        nxt_have = h < 15 and nd[0] >= ops_upto_step(h + 2) and int(taper[h]) >= hoist
        if nxt_have:
            fill.setdefault(min(first, 12), []).append(lambda: frag_reads(h + 1))
        for n in range(max(0, target - nd[0])):
            fill.setdefault(min(first + n, 12) if first > 1 else n + 2, []).append(issue_one)
        for n, f in enumerate(cvt_write(h, 0)):
            fill.setdefault(13 + n, []).append(f)
        mfma_block(["v_mfma_f32_16x16x32_bf16 %s, %s, %s, %s" % (
            q(vAcc + 4 * mt), q(aWf + (mt * 3 + s) * 4, "a"), q(vB + 12 * di + 4 * s),
            q(vQ + 4 * mt) if s == 0 else q(vAcc + 4 * mt)) for mt in range(6) for s in range(3)], fill)
        for f in cvt_write(h, 1):
            f()
        e("    s_nop 0")
        for f in cvt_write(h, 2):
            f()
        for t in range(3):
            ds("ds_read_b128 %s, v%d" % (q(vR + 4 * t), vSrd + t), "r%d_%d" % (h, t))
        stores = store_ops(h)
        have = nxt_have
        fs(4 * h + 3)
    for f in stores:
        f()

    if stamp:
        e("    s_waitcnt vmcnt(0)")
        e("    s_memtime s[46:47]")
        stp(7)
        if diag:
            def spin(lbl):
                e("%s:" % lbl)
                e("    s_sleep 8")
                e("    s_memrealtime s[70:71]")
                e("    s_waitcnt lgkmcnt(0)")
                e("    s_sub_u32 s3, s70, s48")
                e("    s_cmp_lt_u32 s3, s68")
                e("    s_cbranch_scc1 %s" % lbl)
            e("    s_mov_b32 s68, 5000")
            if diag == "skew":
                e("    s_mov_b32 s94, 256")
                e("    s_and_b32 s3, s48, 0x3fffffff")
                e("    v_mov_b32 v24, s3")
                e("    s_sub_u32 s3, 0x40000000, s3")
                e("    v_writelane_b32 v24, s3, 1")
                e("    v_lshlrev_b32 v25, 2, v0")
                e("    s_mov_b64 exec, 3")
                e("    buffer_atomic_umax v24, v25, s[92:95], 0 offen offset:248 sc1")
                e("    s_waitcnt vmcnt(0)")
                spin("L_spin0")
                e("    buffer_load_dword v24, v25, s[92:95], 0 offen offset:248 sc0 sc1")
                e("    s_waitcnt vmcnt(0)")
                e("    v_readlane_b32 s3, v24, 0")
                e("    v_readlane_b32 s37, v24, 1")
                e("    s_mov_b64 exec, -1")
                e("    s_add_u32 s3, s3, s37")
                e("    s_sub_u32 s3, s3, 0x40000000")
                e("    s_mul_i32 s3, s3, 20")
                e("    s_add_u32 s68, s3, 8000")
            elif diag == "tries":
                e("    s_mul_i32 s3, s69, 1000")
                e("    s_add_u32 s68, s68, s3")
            elif diag.startswith("st"):
                e("    s_sub_u32 s3, s%d, s48" % (48 + 2 * int(diag[2:])))
                e("    s_mul_i32 s3, s3, 10")
                e("    s_add_u32 s68, s68, s3")
            spin("L_spin")
        e("    s_sub_u32 s50, s46, s44")
        e("    s_mov_b32 s51, 0x7000")
        e("    s_mov_b32 s66, 0x1000000")
        e("    s_mov_b32 s67, 0x20000")
        e("    s_lshl_b32 s3, s2, 2")
        e("    s_add_u32 s3, s3, s14")
        e("    s_lshl_b32 s3, s3, 6")
        for i in range(16):
            e("    v_mov_b32 v%d, s%d" % (32 + i, 48 + i))
        if fine:
            e("    s_lshl_b32 s37, s3, 2")
            e("    s_add_u32 s37, s37, 0x800000")
            e("    v_lshlrev_b32 v1, 2, v0")
            e("    buffer_store_dword v255, v1, s[64:67], s37 offen")
        e("    v_mov_b32 v1, 0")
        e("    s_mov_b64 exec, 1")
        for i in range(4):
            e("    buffer_store_dwordx4 v[%d:%d], v1, s[64:67], s3 offen offset:%d" % (32 + 4 * i, 35 + 4 * i, 16 * i))
    e("L_end:")
    e("    s_endpgm")
    if place == "auto":
        table_slow()

    if nomfma:
        L = [x for x in L if "v_mfma" not in x]
    out = HEADER + ("; STAMP build\n" if stamp else "")
    out += "; @launch grid=(256,1,1) block=(256,1,1) lds=%d\n" % LDS
    out += '.amdgcn_target "amdgcn-amd-amdhsa--gfx950"\n.text\n.globl %s_kernel\n.p2align 8\n.type %s_kernel,@function\n' % (NAME, NAME)
    out += "\n".join(L) + "\n"
    out += """.section .rodata,"a"
.p2align 6
.amdhsa_kernel %s_kernel
  .amdhsa_next_free_vgpr %d
  .amdhsa_next_free_sgpr 100
  .amdhsa_accum_offset %d
  .amdhsa_group_segment_fixed_size 0
  .amdhsa_kernarg_size 56
  .amdhsa_user_sgpr_count 2
  .amdhsa_user_sgpr_kernarg_segment_ptr 1
  .amdhsa_system_sgpr_workgroup_id_x 1
.end_amdhsa_kernel
""" % (NAME, NV + 144, NV)
    return out


if __name__ == "__main__":
    import inspect
    ap = argparse.ArgumentParser()
    ap.add_argument("-o", default="cdna_kernels/%s.s" % NAME)
    for k, p in inspect.signature(gen).parameters.items():
        if isinstance(p.default, bool):
            ap.add_argument("--" + k, action="store_true")
        else:
            ap.add_argument("--" + k, type=type(p.default), default=p.default)
    a = vars(ap.parse_args())
    o = a.pop("o")
    open(o, "w").write(gen(**a))
```

```python
import argparse

NAME = "standalone__detection_seg_fpn_lateral__vision"
HEADER = open("cdna_kernels/%s.s.ref" % NAME).read().split("; Override launch")[0]
C_BYTES, P_BYTES, W_BYTES = 50331648, 12582912, 18432


def gen(ld="nt", st="sc0 sc1", st2="", pat="wdwwdwwdwwdww", pts="8,13,13,16,16,16,21", taper="4444444333222111",
        place="auto", nstatic=3, split=21, rot=0, bar=4, wbfrom=14, slots=8, rdstep=0, tries=6, tstride=48,
        hoist=3, stpos=7, tlb=0, stamp=False, fine=False, dbgout=False, force=False, nomfma=False, diag=''):
    L = []
    e = L.append
    pts = [int(x) for x in pts.split(",")]

    NS, NP = 6, 3
    PO = NS * 3072
    SO = PO + NP * 1536
    WAVE = SO + 3072
    XB = 4 * WAVE
    WB = XB + W_BYTES
    LDS = WB + 2 * W_BYTES
    assert LDS <= 163840, LDS

    aWf, aW2 = 0, 72
    vLane16, vSw1, vSw2, vBrd, vPrd, vSwr, vSrd = 1, 2, 3, 4, 5, 6, 8
    vWt, vWl, vXw, vXr, vT, vU, vJ, vG, vA, vD = 11, 12, 13, 14, 15, 16, 18, 19, 20, 21
    vWm = 17
    vB, vP, vQ, vAcc, vO, vR = 24, 48, 60, 108, 132, 144
    vWlF, vW2t, vWa, vWo = 156, 60, 108, 192
    NV = 256 if fine else 212
    sC, sP = 76, 84

    vm, lg = [], []

    def q(r, f="v"):
        return "%s[%d:%d]" % (f, r, r + 3)

    def count_after(lst, tag):
        idx = [i for i, t in enumerate(lst) if t == tag]
        return None if not idx else len(lst) - 1 - idx[-1]

    def wait_vm(tag):
        n = count_after(vm, tag)
        if n is not None:
            assert n < 63
            e("    s_waitcnt vmcnt(%d)" % n)
            del vm[:len(vm) - n]

    def wait_lg(tag):
        n = count_after(lg, tag)
        if n is not None:
            n = min(n, 14)
            e("    s_waitcnt lgkmcnt(%d)" % n)
            del lg[:len(lg) - n]

    def ds(text, tag):
        e("    " + text)
        lg.append(tag)

    def stp(i):
        if stamp:
            e("    s_memrealtime s[%d:%d]" % (48 + 2 * i, 49 + 2 * i))
            e("    s_waitcnt lgkmcnt(0)")
            del lg[:]

    def fs(i):
        if fine:
            e("    s_memrealtime s[38:39]")
            e("    s_waitcnt lgkmcnt(0)")
            e("    v_writelane_b32 v255, s38, %d" % i)
            del lg[:]

    e("%s_kernel:" % NAME)
    e("    s_cmp_ge_u32 s2, 256")
    e("    s_cbranch_scc1 L_end")
    if stamp:
        e("    s_memrealtime s[48:49]")
        e("    s_memtime s[44:45]")
        e("    s_load_dwordx2 s[64:65], s[0:1], 48")
    e("    s_load_dwordx8 s[4:11], s[0:1], 0")
    e("    s_load_dwordx4 s[96:99], s[0:1], 32")
    e("    v_readfirstlane_b32 s14, v0")
    e("    v_and_b32 v0, 63, v0")
    e("    v_lshlrev_b32 v%d, 4, v0" % vLane16)
    e("    s_lshr_b32 s14, s14, 6")
    e("    s_and_b32 s3, s2, 1")
    e("    s_lshl_b32 s3, s3, 2")
    e("    s_add_u32 s3, s3, s14")
    e("    s_lshl_b32 s3, s3, 2")
    e("    s_lshr_b32 s15, 0xcb765210, s3")
    e("    s_and_b32 s15, s15, 15")
    e("    s_and_b32 s3, s2, 2")
    e("    s_lshl_b32 s3, s3, 3")
    e("    s_add_u32 s15, s15, s3")
    e("    s_lshr_b32 s40, s2, 3")
    if rot:
        e("    s_mov_b32 s41, s40")
    elif split:
        e("    s_cmp_lt_u32 s40, %d" % split)
        e("    s_cselect_b32 s41, %d, %d" % (split, 32 - split))
        e("    s_cselect_b32 s3, 0, %d" % (7 * split))
        e("    s_add_u32 s40, s40, s3")
    else:
        e("    s_mov_b32 s41, 32")
    e("    s_mul_i32 s33, s14, %d" % WAVE)
    e("    s_and_b32 s74, s14, 1")
    e("    s_mul_i32 s34, s74, 9216")
    e("    s_mul_i32 s35, s14, 9216")
    e("    s_add_u32 s35, s35, %d" % WB)
    e("    s_lshr_b32 s42, s2, 2")
    e("    s_xor_b32 s42, s42, s14")
    e("    s_and_b32 s42, s42, 1")
    nst = 8 if place == "flat" else nstatic
    if place == "baked":
        e("    s_mov_b32 s70, 0x7acec0de")
        e("    s_getreg_b32 s71, hwreg(HW_REG_XCC_ID, 2, 1)")

    def item(k):
        if rot:
            e("    s_add_u32 s40, s41, %d" % ((rot * k) & 31))
            e("    s_and_b32 s40, s40, 31")
            e("    s_cmp_lt_u32 s40, %d" % split)
            e("    s_mov_b32 s3, %d" % (split * k))
            e("    s_cselect_b32 s3, s3, %d" % (7 * split + (32 - split) * k))
            e("    s_add_u32 s40, s40, s3")
        e("    s_mul_i32 s37, s40, 49152")
        par = "s42"
        if k >= nst:
            e("    s_add_u32 s3, s37, 24576")
            e("    s_lshr_b32 s3, s3, 19")
            if place == "auto":
                e("    s_lshr_b32 s72, s3, 2")
                e("    s_lshr_b32 s72, s70, s72")
                e("    s_xor_b32 s3, s3, s72")
            else:
                e("    s_lshr_b32 s3, s70, s3")
            e("    s_xor_b32 s3, s3, s71")
            e("    s_and_b32 s72, s3, 1")
            par = "s72"
        e("    s_lshl_b32 s3, %s, 3" % par)
        e("    s_xor_b32 s3, s3, s15")
        e("    s_mul_i32 s3, s3, 1536")
        e("    s_add_u32 s%d, s37, s3" % (sP + k))
        e("    s_lshl_b32 s37, s37, 1")
        e("    s_add_u32 s3, s37, s3")
        e("    s_lshl_b32 s%d, s3, 1" % (sC + k))
        if not rot:
            e("    s_add_u32 s40, s40, s41")

    item(0)
    if pts[0] > 8:
        item(1)
    e("    s_mov_b32 s18, %d" % C_BYTES)
    e("    s_mov_b32 s19, 0x20000")
    e("    s_mov_b32 s22, %d" % P_BYTES)
    e("    s_mov_b32 s23, 0x20000")
    e("    s_mov_b32 s26, %d" % W_BYTES)
    e("    s_mov_b32 s27, 0x20000")
    e("    s_mov_b32 s30, %d" % C_BYTES)
    e("    s_mov_b32 s31, 0x20000")
    e("    s_mov_b32 s94, %d" % (5 * tstride + 4))
    e("    s_mov_b32 s95, 0x20000")
    e("    s_mov_b32 s75, 0")
    e("    v_xor_b32 v%d, 32, v%d" % (vSw2, vLane16))
    e("    v_and_b32 v%d, 32, v0" % vSw1)
    e("    v_xor_b32 v%d, v%d, v%d" % (vSw1, vSw1, vLane16))
    e("    s_sub_u32 s68, s2, %d" % slots)
    e("    s_cmp_lt_u32 s14, 2")
    e("    s_waitcnt lgkmcnt(0)")
    e("    s_cselect_b64 s[24:25], s[8:9], s[10:11]")
    e("    s_mov_b64 s[20:21], s[6:7]")
    e("    s_mov_b64 s[16:17], s[4:5]")
    e("    s_mov_b64 s[28:29], s[96:97]")
    e("    s_mov_b64 s[92:93], s[98:99]")

    def op_w(t):
        g0 = (t // 4) * 4096
        return ("w", "w%d" % g0, ["    s_add_u32 m0, s35, %d" % g0, "    s_add_u32 s36, s34, %d" % g0],
                ["    buffer_load_dwordx4 v%d, s[24:27], s36 offen offset:%d lds" % (vLane16, 1024 * (t % 4))])

    def ops_h(h):
        k, di = h >> 1, h & 1
        res = []
        if di == 0:
            pre_ = ["    s_add_u32 m0, s33, %d" % (PO + (k % NP) * 1536), "    s_nop 0"]
            res.append(("h%d" % h, "p%d" % h, pre_,
                        ["    buffer_load_dwordx4 v%d, s[20:23], s%d offen %s lds" % (vLane16, sP + k, ld)]))
            res.append(("h%d" % h, "p%d" % h, pre_,
                        ["    s_mov_b32 exec_hi, 0",
                         "    buffer_load_dwordx4 v%d, s[20:23], s%d offen offset:1024 %s lds" % (vLane16, sP + k, ld),
                         "    s_mov_b32 exec_hi, -1"]))
        so = sC + k if di == 0 else 43
        pre_ = ["    s_add_u32 m0, s33, %d" % ((h % NS) * 3072),
                "    s_nop 0" if di == 0 else "    s_add_u32 s43, s%d, 98304" % (sC + k)]
        for t, v in enumerate((vLane16, vSw1, vSw2)):
            res.append(("h%d" % h, "c%d" % h, pre_,
                        ["    buffer_load_dwordx4 v%d, s[16:19], s%d offen offset:%d %s lds" % (v, so, 1024 * t, ld)]))
        return res

    m0key = [None]

    def emit(ops):
        for tag, kk, pre_, ins in ops:
            if kk != m0key[0]:
                for x in pre_:
                    e(x)
            m0key[0] = kk
            for x in ins:
                e(x)
            vm.append(tag)

    W = [op_w(t) for t in range(9)]
    data = [o for h in range(16) for o in ops_h(h)]
    nd = [0]
    items_done = [2 if pts[0] > 8 else 1]
    M = (1 << (2 * slots)) // 3

    def ops_upto_step(h):
        h = min(h, 16)
        return 8 * (h >> 1) + 5 * (h & 1)

    def issue_one():
        k = nd[0] // 8
        if k == items_done[0]:
            if place == "auto" and k == nst:
                table_use()
            item(k)
            items_done[0] += 1
        emit([data[nd[0]]])
        nd[0] += 1

    def issue_to(n):
        while nd[0] < n:
            issue_one()

    def table_load():
        e("    v_mul_u32_u24 v%d, %d, v0" % (vA, tstride))
        e("    buffer_load_dword v%d, v%d, s[92:95], 0 offen" % (vD, vA))
        vm.append("tab")

    def table_use():
        wait_vm("tab")
        e("    s_mov_b32 s68, 0x%x" % M)
        e("    s_mov_b32 s69, 0")
        e("L_tab:")
        e("    v_lshrrev_b32 v%d, 1, v%d" % (vT, vD))
        e("    v_or_b32 v%d, v%d, v%d" % (vU, vT, vD))
        e("    v_and_b32 v%d, s68, v%d" % (vU, vU))
        e("    v_cmp_ne_u32 vcc, s68, v%d" % vU)
        e("    v_bfi_b32 v%d, v%d, 0, v%d" % (vJ, vT, vD))
        e("    v_bfi_b32 v%d, v%d, 0, v%d" % (vG, vD, vT))
        e("    s_and_b32 s3, vcc_lo, 63")
        e("    s_cbranch_scc1 L_tab_slow")
        e("    v_and_b32 v%d, s68, v%d" % (vJ, vJ))
        e("    v_and_b32 v%d, s68, v%d" % (vG, vG))
        e("    v_bcnt_u32_b32 v%d, v%d, 0" % (vJ, vJ))
        e("    v_bcnt_u32_b32 v%d, v%d, 0" % (vG, vG))
        e("    v_readfirstlane_b32 s3, v%d" % vD)
        e("    v_cmp_gt_u32 vcc, v%d, v%d" % (vG, vJ))
        e("    s_bfe_u32 s71, s3, 0x10001")
        e("    s_bfe_u32 s37, s3, 0x10003")
        e("    s_lshl_b32 s37, s37, 1")
        e("    s_add_u32 s71, s71, s37")
        e("    s_bfe_u32 s37, s3, 0x10005")
        e("    s_lshl_b32 s37, s37, 2")
        e("    s_add_u32 s71, s71, s37")
        e("    s_mov_b32 s70, vcc_lo")
        e("    v_cmp_eq_u32 vcc, v%d, v%d" % (vG, vJ))
        e("    s_add_u32 s71, s71, s2")
        e("    s_bfe_u32 s71, s71, 0x10002")
        if dbgout:
            e("    s_lshl_b32 s58, s69, 8")
            e("    s_or_b32 s58, s58, s70")
            e("    s_mov_b32 s59, s71")
        e("    s_cmp_lg_u32 s74, 0")
        e("    s_cselect_b32 s3, vcc_lo, 0")
        e("    s_or_b32 s70, s70, s3")

    def table_slow():
        e("L_tab_slow:")
        e("    s_add_u32 s69, s69, 1")
        e("    s_cmp_le_u32 s69, %d" % tries)
        e("    s_cbranch_scc1 L_tab_reload")
        e("    v_xor_b32 v%d, s68, v%d" % (vU, vU))
        e("    v_lshl_add_u32 v%d, v%d, 1, v%d" % (vU, vU, vU))
        e("    v_or_b32 v%d, v%d, v%d" % (vJ, vU, vD))
        e("    v_mov_b32 v%d, v%d" % (vG, vD))
        e("    s_mov_b32 exec_lo, s3")
        e("    s_mov_b32 exec_hi, 0")
        e("    buffer_atomic_cmpswap v[%d:%d], v%d, s[92:95], 0 offen sc1" % (vJ, vG, vA))
        e("    s_mov_b64 exec, -1")
        e("    s_waitcnt vmcnt(0)")
        e("L_tab_reload:")
        e("    buffer_load_dword v%d, v%d, s[92:95], 0 offen sc0 sc1" % (vD, vA))
        e("    s_waitcnt vmcnt(0)")
        e("    s_branch L_tab")

    def prober_path():
        lgs = slots.bit_length() - 1
        e("L_prober:")
        e("    s_cmp_lg_u32 s14, 0")
        e("    s_cbranch_scc1 L_pw")
        e("    s_getreg_b32 s69, hwreg(HW_REG_XCC_ID, 0, 3)")
        e("    s_lshr_b32 s70, s2, %d                        ; segment 1..5" % lgs)
        e("    s_and_b32 s71, s2, %d                         ; slot" % (slots - 1))
        e("    s_lshr_b32 s3, s71, 1")
        e("    s_xor_b32 s72, s3, s71")
        e("    s_and_b32 s72, s72, 1                        ; phase tested by this slot")
        e("    s_lshr_b32 s3, s69, 2")
        e("    s_xor_b32 s3, s3, s72")
        e("    s_xor_b32 s3, s3, s71")
        e("    s_and_b32 s3, s3, 1")
        e("    s_lshl_b32 s3, s3, 13")
        e("    s_and_b32 s37, s71, 3")
        e("    s_lshl_b32 s68, s70, 2")
        e("    s_add_u32 s68, s68, s37")
        e("    s_lshl_b32 s68, s68, 21")
        e("    s_mul_i32 s37, s71, %d" % (98304 + 16384 + 256))
        e("    s_add_u32 s68, s68, s37")
        e("    s_add_u32 s68, s68, s3")
        e("    s_xor_b32 s37, s68, 8192")
        e("    s_mov_b64 exec, 1")
        e("    buffer_load_dword v%d, v0, s[16:19], s68 offen nt" % vD)
        e("    buffer_load_dword v%d, v0, s[16:19], s37 offen nt" % vD)
        e("    s_mov_b64 exec, -1")
        e("L_pw:")
        e("    s_mov_b32 s75, 1")
        e("    s_barrier")
        m0key[0] = None
        emit(W)
        e("    s_cmp_lg_u32 s14, 0")
        e("    s_cbranch_scc1 L_pd")
        e("    s_sub_u32 s69, s69, s2")
        e("    s_lshl_b32 s3, s69, 1")
        e("    s_and_b32 s3, s3, 4")
        e("    s_lshl_b32 s37, s69, 2")
        e("    s_and_b32 s37, s37, 16")
        e("    s_and_b32 s69, s69, 1")
        e("    s_or_b32 s69, s69, s3")
        e("    s_or_b32 s69, s69, s37")
        e("    s_add_u32 s69, s69, 0x%x" % (((3 * M) & ~63) + 21))
        e("    s_mul_i32 s70, s70, %d" % tstride)
        e("    s_lshl_b32 s71, s71, 1")
        e("    s_add_u32 s72, s72, 1")
        e("    v_mov_b32 v%d, 0" % vA)
        e("    v_mov_b32 v%d, s69" % vB)
        e("    v_writelane_b32 v%d, s70, 0" % vA)
        e("    s_waitcnt vmcnt(10)")
        e("    s_getreg_b32 s3, hwreg(HW_REG_IB_STS, 0, 4)  ; second load still in flight?")
        e("    s_cmp_eq_u32 s3, 10")
        e("    s_cselect_b32 s3, s72, 3")
        e("    s_lshl_b32 s3, s3, s71")
        if force:
            e("    s_mov_b32 s3, 0")
        e("    s_cmp_eq_u32 s2, %d" % slots)
        e("    v_writelane_b32 v%d, s3, 0" % vB)
        e("    s_cselect_b64 exec, 3, 1")
        e("    buffer_atomic_or v%d, v%d, s[92:95], 0 offen sc1" % (vB, vA))
        e("    s_mov_b32 s75, 2")
        e("    s_mov_b64 exec, -1")
        e("L_pd:")
        e("    s_barrier")
        emit(data[:pts[0]])

    if place == "auto":
        e("    s_cmp_lt_u32 s68, %d" % (5 * slots))
        e("    s_cbranch_scc1 L_prober")
    wi = 0
    for ch in pat:
        if ch == "w":
            emit([W[wi]]); wi += 1
        else:
            issue_one()
    assert wi == 9 and nd[0] <= pts[0]
    issue_to(pts[0])
    if place == "auto":
        e("    s_branch L_started")
        keep = list(vm)
        prober_path()
        vm[:] = keep
        e("L_started:")
        m0key[0] = None
    if tlb:
        e("    s_lshr_b32 s3, s2, 3")
        e("    s_lshl_b32 s3, s3, 21")
        e("    s_lshl_b32 s37, s2, 8")
        e("    s_add_u32 s3, s3, s37")
        e("    s_cmp_eq_u32 s14, 1")
        e("    s_cselect_b32 s3, s3, 0x7ff00000")
        e("    s_mov_b64 exec, 1")
        for srd in ("s[28:31]", "s[16:19]", "s[20:23]")[:tlb]:
            e("    buffer_load_dword v22, v0, %s, s3 offen nt" % srd)
            vm.append("tlb")
        e("    s_mov_b64 exec, -1")
    wtail = count_after(vm, "w")
    vm[:] = [t for t in vm if t != "w"]

    e("    v_and_b32 v%d, 15, v0                        ; j" % vJ)
    e("    v_lshrrev_b32 v%d, 4, v0                     ; g" % vG)
    e("    v_lshrrev_b32 v%d, 2, v%d" % (vT, vJ))
    e("    v_and_b32 v%d, 3, v%d" % (vU, vJ))
    e("    v_lshl_add_u32 v%d, v%d, 3, v%d" % (vWt, vG, vT))
    e("    v_mul_u32_u24 v%d, 192, v%d" % (vWt, vWt))
    e("    v_lshl_add_u32 v%d, v%d, 4, v%d" % (vWt, vU, vWt))
    e("    v_add_u32 v%d, %d, v%d" % (vWt, WB + W_BYTES, vWt))
    e("    s_lshr_b32 s73, s14, 1")
    e("    s_lshl_b32 s3, s73, 3")
    e("    v_add_u32 v%d, s3, v%d" % (vWm, vWt))
    e("    s_mul_i32 s3, s74, 768")
    e("    s_add_u32 s3, s3, %d" % WB)
    e("    v_lshl_add_u32 v%d, v%d, 3, v%d" % (vWl, vT, vU))
    e("    v_mul_u32_u24 v%d, 192, v%d" % (vWl, vWl))
    e("    v_lshl_add_u32 v%d, v%d, 4, v%d" % (vWl, vG, vWl))
    e("    v_add_u32 v%d, s3, v%d" % (vWl, vWl))
    e("    v_add_u32 v%d, %d, v%d" % (vXr, XB, vLane16))
    e("    s_mul_i32 s3, s73, 3072")
    e("    s_lshl_b32 s37, s74, 3")
    e("    s_add_u32 s3, s3, s37")
    e("    v_add_u32 v%d, s3, v%d" % (vXw, vXr))
    e("    v_mul_u32_u24 v%d, 192, v%d" % (vSwr, vJ))
    e("    v_and_b32 v%d, 2, v%d" % (vU, vT))
    e("    v_xor_b32 v%d, v%d, v%d" % (vU, vU, vG))
    e("    v_lshl_add_u32 v%d, v%d, 4, v%d" % (vBrd, vU, vSwr))
    e("    v_add_u32 v%d, s33, v%d" % (vBrd, vBrd))
    e("    v_lshrrev_b32 v%d, 1, v%d" % (vT, vJ))
    e("    v_mul_u32_u24 v%d, 192, v%d" % (vPrd, vT))
    e("    v_lshl_add_u32 v%d, v%d, 4, v%d" % (vPrd, vG, vPrd))
    e("    v_add_u32 v%d, s33, v%d" % (vPrd, vPrd))
    e("    s_add_u32 s73, s33, %d" % SO)
    e("    v_and_b32 v%d, 3, v%d" % (vT, vT))
    e("    v_xor_b32 v%d, v%d, v%d" % (vT, vT, vG))
    e("    v_lshl_add_u32 v%d, v%d, 4, v%d" % (vSwr, vT, vSwr))
    e("    v_add_u32 v%d, s73, v%d" % (vSwr, vSwr))
    for t in range(3):
        r = vSrd + t
        e("    v_add_u32 v%d, %d, v0" % (r, 64 * t))
        e("    v_mul_u32_u24 v%d, 2731, v%d" % (vU, r))
        e("    v_bfe_u32 v%d, v%d, 16, 2" % (vU, vU))
        e("    v_xor_b32 v%d, v%d, v%d" % (r, r, vU))
        e("    v_lshl_add_u32 v%d, v%d, 4, s73" % (r, r))

    if place == "auto":
        e("    s_waitcnt vmcnt(%d)" % (pts[0] + 1 + tlb))
        e("    s_cmp_eq_u32 s75, 2")
        e("    s_cbranch_scc1 L_wok")
        e("    s_waitcnt vmcnt(%d)" % (pts[0] + tlb))
        e("    s_cmp_eq_u32 s75, 1")
        e("    s_cbranch_scc1 L_wok")
    e("    s_waitcnt vmcnt(%d)" % wtail)
    e("L_wok:")
    e("    s_barrier")
    stp(2)

    def tr_off(mt, s, hh):
        return (32 * s + 4 * hh) * 192 + 64 * (mt >> 1) + 8 * (mt & 1)

    def mine(i):
        for s in range(3):
            for hh in range(2):
                r = vW2t + (i * 3 + s) * 4 + 2 * hh
                ds("ds_read_b64_tr_b16 v[%d:%d], v%d offset:%d" % (r, r + 1, vWm, tr_off(2 * i, s, hh)), "m%d" % i)

    full = [(mt, s, hh) for mt in range(6) for s in range(3) for hh in range(2)]

    def w2_reads(n):
        for _ in range(min(n, len(full))):
            mt, s, hh = full.pop(0)
            r = aW2 + (mt * 3 + s) * 4 + 2 * hh
            ds("ds_read_b64_tr_b16 a[%d:%d], v%d offset:%d" % (r, r + 1, vWt, tr_off(mt, s, hh)), "w2")

    mine(0)
    for s in range(3):
        for ks in range(3):
            ds("ds_read_b128 %s, v%d offset:%d" % (q(vWlF + (s * 3 + ks) * 4), vWl, 32 * s * 192 + 64 * ks), "l%d" % s)
    issue_to(pts[1])
    mine(1)
    mine(2)

    def wf_out(i, s):
        d = vWa + (i * 3 + s) * 4
        o = vWo + (i * 3 + s) * 2
        e("    v_cvt_pk_bf16_f32 v%d, v%d, v%d" % (o, d, d + 1))
        e("    v_cvt_pk_bf16_f32 v%d, v%d, v%d" % (o + 1, d + 2, d + 3))
        ds("ds_write_b64 v%d, v[%d:%d] offset:%d" % (vXw, o, o + 1, 1024 * (6 * i + s)), "x")

    for i in range(3):
        for s in range(3):
            wait_lg("l%d" % s)
            wait_lg("m%d" % i)
            for ks in range(3):
                d = vWa + (i * 3 + s) * 4
                e("    v_mfma_f32_16x16x32_bf16 %s, %s, %s, %s" % (
                    q(d), q(vWlF + (s * 3 + ks) * 4), q(vW2t + (i * 3 + ks) * 4), "0" if ks == 0 else q(d)))
                if i:
                    w2_reads(1)
            if i:
                wf_out(i - 1, s)
        issue_to(pts[2 + i])
    w2_reads(6)
    for s in range(3):
        wf_out(2, s)
    issue_to(pts[5])
    wait_lg("x")
    e("    s_barrier")
    stp(3)
    w2_reads(99)
    assert max(pts) <= ops_upto_step(NS)

    def wf_read(f):
        ds("ds_read_b128 %s, v%d offset:%d" % (q(aWf + 4 * f, "a"), vXr, 1024 * f), "wf")

    def frag_reads(h):
        k = h >> 1
        wait_vm("h%d" % h)
        if h in (0, 7, 15) and not (dbgout and h == 7):
            stp({0: 4, 7: 5, 15: 6}[h])
        if h & 1 == 0:
            for s in range(3):
                ds("ds_read_b128 %s, v%d offset:%d" % (q(vP + 4 * s), vPrd, PO + (k % NP) * 1536 + 64 * s), "p%d" % k)
        for s in range(3):
            ds("ds_read_b128 %s, v%d offset:%d" % (q(vB + 12 * (h & 1) + 4 * s), vBrd, (h % NS) * 3072 + 64 * s), "b%d" % h)

    def store_ops(h):
        def one(t):
            so = sC + (h >> 1)
            if h & 1:
                if t == 0:
                    e("    s_add_u32 s32, s%d, 98304" % so)
                so = 32
            wait_lg("r%d_%d" % (h, t))
            e("    buffer_store_dwordx4 %s, v%d, s[28:31], s%d offen offset:%d %s" % (
                q(vR + 4 * t), vLane16, so, 1024 * t, st if h < wbfrom else st2))
            vm.append("o%d" % h)
        return [lambda t=t: one(t) for t in range(3)]

    def mfma_block(ms, fill):
        for n, m in enumerate(ms, 1):
            e("    " + m)
            for f in fill.get(n, []):
                f()

    def cvt_write(h, sp):
        o, a = vO + 4 * sp, vAcc + 8 * sp
        r = [lambda i=i: e("    v_cvt_pk_bf16_f32 v%d, v%d, v%d" % (o + i, a + 2 * i, a + 2 * i + 1)) for i in range(4)]
        r.append(lambda: ds("ds_write_b128 v%d, %s offset:%d" % (vSwr, q(o), 64 * sp), "s%d" % h))
        return r

    stores = []
    frag_reads(0)
    for f in range(6):
        wf_read(f)
    issue_to(pts[6])
    have = True
    for h in range(16):
        k, di = h >> 1, h & 1
        if not have:
            for f in stores:
                f()
            stores = []
        if bar and h and h % bar == 0:
            e("    s_barrier")
        if place == "auto" and h == rdstep:
            table_load()
        fs(4 * h)
        if not have:
            frag_reads(h)
        Dh = int(taper[h])
        assert Dh < NS
        target = ops_upto_step(h + Dh + 1)
        if not have:
            issue_to(target)
        fs(4 * h + 1)
        if di == 0:
            wait_lg("w2")
            wait_lg("p%d" % k)
            fill = {}
            for n, f in enumerate(stores):
                fill.setdefault(stpos + 2 * n, []).append(f)
            stores = []
            if h == 0:
                for f in range(6, 18):
                    fill.setdefault(f - 5, []).append(lambda f=f: wf_read(f))
            mfma_block(["v_mfma_f32_16x16x32_bf16 %s, %s, %s, %s" % (
                q(vQ + 4 * mt), q(aW2 + (mt * 3 + s) * 4, "a"), q(vP + 4 * s), "0" if s == 0 else q(vQ + 4 * mt))
                for mt in range(6) for s in range(3)], fill)
        wait_lg("b%d" % h)
        wait_lg("wf")
        fill = {}
        first = 1
        for n, f in enumerate(stores):
            fill.setdefault(stpos + n, []).append(f)
            first = stpos + n + 1
        stores = []
        nxt_have = h < 15 and nd[0] >= ops_upto_step(h + 2) and int(taper[h]) >= hoist
        if nxt_have:
            fill.setdefault(min(first, 12), []).append(lambda: frag_reads(h + 1))
        for n in range(max(0, target - nd[0])):
            fill.setdefault(min(first + n, 12) if first > 1 else n + 2, []).append(issue_one)
        for n, f in enumerate(cvt_write(h, 0)):
            fill.setdefault(13 + n, []).append(f)
        mfma_block(["v_mfma_f32_16x16x32_bf16 %s, %s, %s, %s" % (
            q(vAcc + 4 * mt), q(aWf + (mt * 3 + s) * 4, "a"), q(vB + 12 * di + 4 * s),
            q(vQ + 4 * mt) if s == 0 else q(vAcc + 4 * mt)) for mt in range(6) for s in range(3)], fill)
        for f in cvt_write(h, 1):
            f()
        e("    s_nop 0")
        for f in cvt_write(h, 2):
            f()
        for t in range(3):
            ds("ds_read_b128 %s, v%d" % (q(vR + 4 * t), vSrd + t), "r%d_%d" % (h, t))
        stores = store_ops(h)
        have = nxt_have
        fs(4 * h + 3)
    for f in stores:
        f()

    if stamp:
        e("    s_waitcnt vmcnt(0)")
        e("    s_memtime s[46:47]")
        stp(7)
        if diag:
            def spin(lbl):
                e("%s:" % lbl)
                e("    s_sleep 8")
                e("    s_memrealtime s[70:71]")
                e("    s_waitcnt lgkmcnt(0)")
                e("    s_sub_u32 s3, s70, s48")
                e("    s_cmp_lt_u32 s3, s68")
                e("    s_cbranch_scc1 %s" % lbl)
            e("    s_mov_b32 s68, 5000")
            if diag == "skew":
                e("    s_mov_b32 s94, 256")
                e("    s_and_b32 s3, s48, 0x3fffffff")
                e("    v_mov_b32 v24, s3")
                e("    s_sub_u32 s3, 0x40000000, s3")
                e("    v_writelane_b32 v24, s3, 1")
                e("    v_lshlrev_b32 v25, 2, v0")
                e("    s_mov_b64 exec, 3")
                e("    buffer_atomic_umax v24, v25, s[92:95], 0 offen offset:248 sc1")
                e("    s_waitcnt vmcnt(0)")
                spin("L_spin0")
                e("    buffer_load_dword v24, v25, s[92:95], 0 offen offset:248 sc0 sc1")
                e("    s_waitcnt vmcnt(0)")
                e("    v_readlane_b32 s3, v24, 0")
                e("    v_readlane_b32 s37, v24, 1")
                e("    s_mov_b64 exec, -1")
                e("    s_add_u32 s3, s3, s37")
                e("    s_sub_u32 s3, s3, 0x40000000")
                e("    s_mul_i32 s3, s3, 20")
                e("    s_add_u32 s68, s3, 8000")
            elif diag == "tries":
                e("    s_mul_i32 s3, s69, 1000")
                e("    s_add_u32 s68, s68, s3")
            elif diag == "align":
                e("    s_bfe_u32 s3, s28, 0x3000c")
                e("    s_mul_i32 s3, s3, 1000")
                e("    s_add_u32 s68, s68, s3")
                e("    s_bfe_u32 s3, s16, 0x3000c")
                e("    s_mul_i32 s3, s3, 10000")
                e("    s_add_u32 s68, s68, s3")
                e("    s_or_b32 s3, s28, s16")
                e("    s_and_b32 s3, s3, 0xfff")
                e("    s_cselect_b32 s3, 500, 0")
                e("    s_add_u32 s68, s68, s3")
            elif diag.startswith("st"):
                e("    s_sub_u32 s3, s%d, s48" % (48 + 2 * int(diag[2:])))
                e("    s_mul_i32 s3, s3, 10")
                e("    s_add_u32 s68, s68, s3")
            spin("L_spin")
        e("    s_sub_u32 s50, s46, s44")
        e("    s_mov_b32 s51, 0x7000")
        e("    s_mov_b32 s66, 0x1000000")
        e("    s_mov_b32 s67, 0x20000")
        e("    s_lshl_b32 s3, s2, 2")
        e("    s_add_u32 s3, s3, s14")
        e("    s_lshl_b32 s3, s3, 6")
        for i in range(16):
            e("    v_mov_b32 v%d, s%d" % (32 + i, 48 + i))
        if fine:
            e("    s_lshl_b32 s37, s3, 2")
            e("    s_add_u32 s37, s37, 0x800000")
            e("    v_lshlrev_b32 v1, 2, v0")
            e("    buffer_store_dword v255, v1, s[64:67], s37 offen")
        e("    v_mov_b32 v1, 0")
        e("    s_mov_b64 exec, 1")
        for i in range(4):
            e("    buffer_store_dwordx4 v[%d:%d], v1, s[64:67], s3 offen offset:%d" % (32 + 4 * i, 35 + 4 * i, 16 * i))
    e("L_end:")
    e("    s_endpgm")
    if place == "auto":
        table_slow()

    if nomfma:
        L = [x for x in L if "v_mfma" not in x]
    out = HEADER + ("; STAMP build\n" if stamp else "")
    out += "; @launch grid=(256,1,1) block=(256,1,1) lds=%d\n" % LDS
    out += '.amdgcn_target "amdgcn-amd-amdhsa--gfx950"\n.text\n.globl %s_kernel\n.p2align 8\n.type %s_kernel,@function\n' % (NAME, NAME)
    out += "\n".join(L) + "\n"
    out += """.section .rodata,"a"
.p2align 6
.amdhsa_kernel %s_kernel
  .amdhsa_next_free_vgpr %d
  .amdhsa_next_free_sgpr 100
  .amdhsa_accum_offset %d
  .amdhsa_group_segment_fixed_size 0
  .amdhsa_kernarg_size 56
  .amdhsa_user_sgpr_count 2
  .amdhsa_user_sgpr_kernarg_segment_ptr 1
  .amdhsa_system_sgpr_workgroup_id_x 1
.end_amdhsa_kernel
""" % (NAME, NV + 144, NV)
    return out


if __name__ == "__main__":
    import inspect
    ap = argparse.ArgumentParser()
    ap.add_argument("-o", default="cdna_kernels/%s.s" % NAME)
    for k, p in inspect.signature(gen).parameters.items():
        if isinstance(p.default, bool):
            ap.add_argument("--" + k, action="store_true")
        else:
            ap.add_argument("--" + k, type=type(p.default), default=p.default)
    a = vars(ap.parse_args())
    o = a.pop("o")
    open(o, "w").write(gen(**a))
```

```python
import argparse

NAME = "standalone__detection_seg_fpn_lateral__vision"
HEADER = open("cdna_kernels/%s.s.ref" % NAME).read().split("; Override launch")[0]
C_BYTES, P_BYTES, W_BYTES = 50331648, 12582912, 18432

DOC = """;
;
; (2 bits per vote: 01 / 10 vote, 11 abstain). A table word is used only when all its votes are set, and a complete
"""


def gen(ld="nt", st="sc1", pat="wddwwdwwddwwdww", pts="10,13,13,16,16,16,23", taper="4444433333222111",
        rot=11, bar="48c", wbfrom=15, rdpos=3, tries=6, ew0=2, spread=3, cfirst=1, wfpre=0, barpos=0,
        stamp=False, dbgout=False, force=False, dups=""):
    L = []
    e = L.append
    pts = [int(x) for x in pts.split(",")]
    NST, SLOTS, TSTR = 2, 8, 48
    M = 0x5555

    NS = 5
    PO = NS * 3072
    SO = PO + 4 * 1536
    WAVE = SO + 3072
    XB = 4 * WAVE
    WB = XB + W_BYTES
    LDS = WB + 2 * W_BYTES

    aWf, aW2 = 0, 72
    vLane16, vSw1, vSw2, vBrd, vPrd, vSwr, vHi32, vSrd = 1, 2, 3, 4, 5, 6, 7, 8
    vWt, vWl, vXw, vXr, vT, vU, vWm, vJ, vG, vA, vD = 11, 12, 13, 14, 15, 16, 17, 18, 19, 20, 21
    vB, vP, vQ, vQx, vAcc, vO, vR = 24, 36, 48, 72, 96, 120, 132
    vWlF, vW2t, vWa, vWo = 132, 48, 96, 168
    vE0, vE1, vSt, vL1, vL2, vPa = 186, 191, 196, 208, 209, 210
    NV = 220
    sC, sP = 76, 84

    vm, lg = [], []

    def q(r, f="v"):
        return "%s[%d:%d]" % (f, r, r + 3)

    def c(text, note):
        e("    %-52s ; %s" % (text, note))

    def count_after(lst, tag):
        idx = [i for i, t in enumerate(lst) if t == tag]
        return None if not idx else len(lst) - 1 - idx[-1]

    def wait_vm(tag):
        n = count_after(vm, tag)
        if n is not None:
            assert n < 63
            e("    s_waitcnt vmcnt(%d)" % n)
            del vm[:len(vm) - n]

    def wait_lg(*tags):
        ns = [n for n in (count_after(lg, t) for t in tags) if n is not None]
        if ns:
            n = min(min(ns), 14)
            e("    s_waitcnt lgkmcnt(%d)" % n)
            del lg[:len(lg) - n]

    def ds(text, tag):
        e("    " + text)
        lg.append(tag)

    def stp(i):
        if stamp:
            e("    s_memrealtime s[%d:%d]" % (48 + 2 * i, 49 + 2 * i))
            e("    s_waitcnt lgkmcnt(0)")
            del lg[:]

    def row_of(k, dst):
        if k == 0:
            e("    s_mul_i32 %s, s41, 49152" % dst)
            return
        e("    s_add_u32 s3, s41, %d" % ((rot * k) & 31))
        e("    s_and_b32 s3, s3, 31")
        e("    s_add_u32 s3, s3, %d" % (32 * k))
        e("    s_mul_i32 %s, s3, 49152" % dst)

    def offsets(k, col):
        row_of(k, "s37")
        e("    s_add_u32 s%d, s37, %s" % (sP + k, col))
        e("    s_add_u32 s3, s37, s%d" % (sP + k))
        e("    s_lshl_b32 s%d, s3, 1" % (sC + k))

    e("%s_kernel:" % NAME)
    e("    s_cmp_ge_u32 s2, 256")
    e("    s_cbranch_scc1 L_end")
    if stamp:
        e("    s_memrealtime s[48:49]")
        e("    s_memtime s[44:45]")
        e("    s_load_dwordx2 s[64:65], s[0:1], 48")
    c("s_load_dwordx4 s[8:11], s[0:1], 16", "w_lat, w_out")
    c("s_load_dwordx2 s[20:21], s[0:1], 8", "p")
    c("s_load_dwordx2 s[16:17], s[0:1], 0", "c")
    c("s_load_dwordx2 s[28:29], s[0:1], 32", "out")
    c("s_load_dwordx2 s[92:93], s[0:1], 40", "vote table")
    c("s_memtime s[12:13]", "seed: picks the cache lines the probe races")
    e("    v_readfirstlane_b32 s14, v0")
    e("    v_and_b32 v0, 63, v0")
    e("    v_lshlrev_b32 v%d, 4, v0" % vLane16)
    c("s_lshr_b32 s14, s14, 6", "wave")
    c("s_and_b32 s71, s2, 7", "column class / vote slot")
    e("    s_lshl_b32 s15, s14, 3")
    e("    s_add_u32 s15, s15, s71")
    c("s_mul_i32 s15, s15, 1536", "column offset of the two fixed slices, in p bytes")
    c("s_lshr_b32 s41, s2, 3", "row group")
    c("s_mul_i32 s33, s14, %d" % WAVE, "wave LDS base")
    e("    s_and_b32 s74, s14, 1")
    e("    s_mul_i32 s34, s74, 9216")
    e("    s_mul_i32 s35, s14, 9216")
    e("    s_add_u32 s35, s35, %d" % WB)
    offsets(0, "s15")
    offsets(1, "s15")
    for r, v in ((18, C_BYTES), (22, P_BYTES), (26, W_BYTES), (30, C_BYTES), (94, 5 * TSTR + 4)):
        e("    s_mov_b32 s%d, %d" % (r, v))
        e("    s_mov_b32 s%d, 0x20000" % (r + 1))
    e("    s_mov_b32 s75, 0")
    e("    v_xor_b32 v%d, 32, v%d" % (vSw2, vLane16))
    e("    v_and_b32 v%d, 32, v0" % vHi32)
    e("    v_xor_b32 v%d, v%d, v%d" % (vSw1, vHi32, vLane16))
    e("    s_getreg_b32 s69, hwreg(HW_REG_XCC_ID, 0, 3)")
    e("    s_lshr_b32 s3, s71, 1")
    e("    s_xor_b32 s72, s3, s71")
    c("s_and_b32 s72, s72, 1", "phase tested by this slot")
    e("    s_lshr_b32 s37, s69, 2")
    e("    s_xor_b32 s3, s3, s37")
    e("    s_and_b32 s3, s3, 1")
    c("s_lshl_b32 s3, s3, 13", "address bit 13 that is near if that phase holds")
    e("    s_and_b32 s37, s71, 3")
    e("    s_lshl_b32 s68, s41, 2")
    e("    s_or_b32 s68, s68, s37")
    e("    s_cmp_eq_u32 s41, 1")
    e("    s_cselect_b32 s37, 2, 0")
    e("    s_or_b32 s68, s68, s37")
    e("    s_lshl_b32 s68, s68, 21")
    c("s_or_b32 s68, s68, s3", "probed page of segment s41")
    e("    s_mov_b32 m0, s35")
    e("    s_mov_b32 s36, s34")
    e("    s_sub_u32 s3, s41, 1")
    e("    s_cmp_lt_u32 s3, 5")
    e("    s_cbranch_scc1 L_prober")
    e("    s_cmp_lt_u32 s14, 2")
    e("    s_waitcnt lgkmcnt(0)")
    e("    s_cselect_b64 s[24:25], s[8:9], s[10:11]")

    def op_w(t):
        g0 = (t // 4) * 4096
        return ("w", "w%d" % g0, ["    s_add_u32 m0, s35, %d" % g0, "    s_add_u32 s36, s34, %d" % g0],
                ["    buffer_load_dwordx4 v%d, s[24:27], s36 offen offset:%d lds" % (vLane16, 1024 * (t % 4))])

    def ops_p(k):
        if k >= NST:
            pa, pb = vPa + 2 * (k & 1), vPa + 2 * (k & 1) + 1
        else:
            pa = pb = vSw2 if k & 1 else vLane16
        pre_ = ["    s_add_u32 m0, s33, %d" % (PO + (k % 4) * 1536), "    s_nop 0"]
        return [["p%d" % k, pre_, ["    buffer_load_dwordx4 v%d, s[20:23], s%d offen %s lds" % (pa, sP + k, ld)]],
                ["p%d" % k, pre_, ["    s_mov_b32 exec_hi, 0",
                                   "    buffer_load_dwordx4 v%d, s[20:23], s%d offen offset:1024 %s lds" % (pb, sP + k, ld),
                                   "    s_mov_b32 exec_hi, -1"]]]

    def ops_c(h):
        k, di = h >> 1, h & 1
        cv = (vSt + 3 * (k % 4), vL1, vL2) if k >= NST else (vLane16, vSw1, vSw2)
        pre_ = ["    s_add_u32 m0, s33, %d" % ((h % NS) * 3072),
                "    s_nop 0" if di == 0 else "    s_add_u32 s43, s%d, 98304" % (sC + k)]
        return [["c%d" % h, pre_, ["    buffer_load_dwordx4 v%d, s[16:19], s%d offen offset:%d %s lds" % (
            v, 43 if di else sC + k, 1024 * t, ld)]] for t, v in enumerate(cv)]

    per = [ops_c(h) for h in range(16)]
    for h in range(0, 16, 4):
        pp = ops_p(h >> 1) + ops_p((h >> 1) + 1)
        if h > 2 * NST:
            for n in range(spread):
                per[h - spread + n].append(pp.pop(0))
        per[h] = per[h] + pp if (cfirst and h == 2 * NST) else pp + per[h]
    data = [("h%d" % h,) + tuple(o) for h in range(16) for o in per[h]]
    first_op = [next(i for i, o in enumerate(data) if o[0] == "h%d" % h) for h in range(16)] + [len(data)]
    W = [op_w(t) for t in range(9)]
    m0key = ["w0"]
    nd = [0]
    ready = set()

    def emit(ops):
        for tag, kk, pre_, ins in ops:
            if kk != m0key[0]:
                for x in pre_:
                    e(x)
            m0key[0] = kk
            for x in ins:
                e(x)
            vm.append(tag)

    def lane_offsets(kind, k):
        e("    s_bitcmp1_b32 s38, %d" % k)
        e("    s_cselect_b64 vcc, -1, 0")
        if kind == "c":
            st_ = vSt + 3 * (k % 4)
            for t in range(3):
                e("    v_cndmask_b32 v%d, v%d, v%d, vcc" % (st_ + t, vE0 + t, vE1 + t))
            e("    v_xor_b32 v%d, v%d, v%d" % (vL1, vHi32, st_ + 1))
            e("    v_xor_b32 v%d, 32, v%d" % (vL2, st_ + 2))
        else:
            for t in range(2):
                r = vPa + 2 * (k & 1) + t
                e("    v_cndmask_b32 v%d, v%d, v%d, vcc" % (r, vE0 + 3 + t, vE1 + 3 + t))
                if k & 1:
                    e("    v_xor_b32 v%d, 32, v%d" % (r, r))

    def issue_one():
        key = data[nd[0]][1]
        k = int(key[1:]) if key[0] == "p" else int(key[1:]) >> 1
        if k >= NST:
            if "tab" not in ready:
                ready.add("tab")
                table_use()
            if (key[0], k) not in ready:
                ready.add((key[0], k))
                lane_offsets(key[0], k)
        emit([data[nd[0]]])
        nd[0] += 1

    def issue_to(n):
        while nd[0] < n:
            issue_one()

    def table_load():
        c("buffer_load_dword v%d, v%d, s[92:95], 0 offen" % (vD, vA), "lane 0: die map, lane k: segment of item k")
        vm.append("tab")

    def table_use():
        wait_vm("tab")
        e("L_tab:")
        e("    v_lshrrev_b32 v%d, 1, v%d" % (vT, vD))
        e("    v_readfirstlane_b32 s37, v%d" % vD)
        e("    v_or_b32 v%d, v%d, v%d" % (vU, vT, vD))
        e("    v_and_b32 v%d, s68, v%d" % (vJ, vD))
        e("    v_and_b32 v%d, s68, v%d" % (vU, vU))
        e("    v_and_b32 v%d, s68, v%d" % (vG, vT))
        e("    v_cmp_ne_u32 s[4:5], s68, v%d" % vU)
        e("    v_bcnt_u32_b32 v%d, v%d, v%d" % (vJ, vJ, vJ + 4))
        e("    v_bcnt_u32_b32 v%d, v%d, 0" % (vG, vG))
        e("    s_bitcmp1_b32 s37, s71")
        c("v_cmp_ge_u32 vcc, v%d, v%d" % (vG, vJ), "majority phase; a tie alternates by wave")
        e("    s_cselect_b32 s38, s70, s72")
        e("    s_and_b32 s3, s4, 0xfd")
        e("    s_cbranch_scc1 L_tab_slow")
        c("s_xor_b32 s38, s38, vcc_lo", "bit k: half taken by this wave in item k")
        if dbgout:
            e("    s_lshl_b32 s58, s69, 8")
            e("    s_and_b32 s3, vcc_lo, 0xfc")
            e("    s_lshr_b32 s3, s3, 2")
            e("    s_or_b32 s58, s58, s3")
            e("    s_mov_b32 s59, 0")

    def table_slow():
        e("L_tab_slow:")
        e("    s_add_u32 s69, s69, 1")
        e("    s_cmp_le_u32 s69, %d" % tries)
        e("    s_cbranch_scc1 L_tab_reload")
        e("    v_xor_b32 v%d, s68, v%d" % (vU, vU))
        e("    v_lshl_add_u32 v%d, v%d, 1, v%d" % (vU, vU, vU))
        e("    v_or_b32 v%d, v%d, v%d" % (vJ, vU, vD))
        e("    v_mov_b32 v%d, v%d" % (vG, vD))
        e("    s_mov_b32 exec_lo, s3")
        e("    s_mov_b32 exec_hi, 0")
        c("buffer_atomic_cmpswap v[%d:%d], v%d, s[92:95], 0 offen sc1" % (vJ, vG, vA), "close missing votes")
        e("    s_mov_b64 exec, -1")
        e("    s_waitcnt vmcnt(0)")
        e("L_tab_reload:")
        e("    buffer_load_dword v%d, v%d, s[92:95], 0 offen sc0 sc1" % (vD, vA))
        e("    s_waitcnt vmcnt(0)")
        e("    s_branch L_tab")

    def prober_path():
        e("L_prober:")
        e("    s_mov_b32 s75, 1")
        e("    s_cmp_lt_u32 s14, 2")
        e("    s_waitcnt lgkmcnt(0)")
        e("    s_cselect_b64 s[24:25], s[8:9], s[10:11]")
        e("    s_cmp_lg_u32 s14, 0")
        e("    s_cbranch_scc1 L_pw")
        e("    s_mul_i32 s37, s12, 0x9e3779b1")
        e("    s_lshr_b32 s37, s37, 11")
        e("    s_and_b32 s37, s37, 0x1fdf80")
        e("    s_or_b32 s68, s68, s37")
        e("    s_mov_b64 exec, 1")
        e("    s_xor_b32 s37, s68, 8192")
        e("    buffer_load_dword v%d, v0, s[16:19], s68 offen nt" % vD)
        e("    buffer_load_dword v%d, v0, s[16:19], s37 offen nt" % vD)
        e("    s_mov_b64 exec, -1")
        e("L_pw:")
        e("    s_barrier")
        m0key[0] = "w0"
        emit(W)
        e("    s_cmp_lg_u32 s14, 0")
        e("    s_cbranch_scc1 L_pd")
        e("    s_sub_u32 s69, s69, s2")
        e("    s_and_b32 s69, s69, 7")
        e("    s_lshl_b32 s69, s69, 1")
        e("    s_lshr_b32 s69, 0x55aa55, s69")
        c("s_or_b32 s69, s69, 0xff00", "die of column classes 0..3 under this placement")
        e("    s_and_b32 s69, s69, 0xffff")
        e("    s_mul_i32 s70, s41, %d" % TSTR)
        e("    s_lshl_b32 s37, s71, 1")
        e("    s_add_u32 s72, s72, 1")
        e("    v_mov_b32 v%d, 0" % vA)
        e("    v_mov_b32 v%d, s69" % vB)
        e("    v_writelane_b32 v%d, s70, 0" % vA)
        e("    s_waitcnt vmcnt(10)")
        c("s_getreg_b32 s3, hwreg(HW_REG_IB_STS, 0, 4)", "vm_cnt: second load still in flight?")
        e("    s_cmp_eq_u32 s3, 10")
        e("    s_cselect_b32 s3, s72, 3")
        e("    s_lshl_b32 s3, s3, s37")
        if force:
            e("    s_mov_b32 s3, 0")
        e("    s_cmp_eq_u32 s2, %d" % SLOTS)
        e("    v_writelane_b32 v%d, s3, 0" % vB)
        e("    s_cselect_b64 exec, 3, 1")
        e("    buffer_atomic_or v%d, v%d, s[92:95], 0 offen sc1" % (vB, vA))
        e("    s_mov_b32 s75, 2")
        e("    s_mov_b64 exec, -1")
        e("L_pd:")
        e("    s_barrier")
        emit(data[:pts[0]])

    wi = 0
    for ch in pat:
        if ch == "w":
            emit([W[wi]]); wi += 1
        else:
            issue_one()
    assert wi == 9 and nd[0] <= pts[0] <= first_op[2 * NST]
    issue_to(pts[0])
    e("    s_branch L_started")
    keep = list(vm)
    prober_path()
    vm[:] = keep
    e("L_started:")
    m0key[0] = None
    wtail = count_after(vm, "w")
    vm[:] = [t for t in vm if t != "w"]

    e("    v_and_b32 v%d, 15, v0" % vJ)
    e("    v_lshrrev_b32 v%d, 4, v0" % vG)
    e("    v_lshrrev_b32 v%d, 2, v%d" % (vT, vJ))
    e("    v_and_b32 v%d, 3, v%d" % (vU, vJ))
    e("    v_lshl_add_u32 v%d, v%d, 3, v%d" % (vWt, vG, vT))
    e("    v_mul_u32_u24 v%d, 192, v%d" % (vWt, vWt))
    e("    v_lshl_add_u32 v%d, v%d, 4, v%d" % (vWt, vU, vWt))
    c("v_add_u32 v%d, %d, v%d" % (vWt, WB + W_BYTES, vWt), "w_out transpose reads")
    e("    s_lshr_b32 s73, s14, 1")
    e("    s_lshl_b32 s3, s73, 3")
    e("    v_add_u32 v%d, s3, v%d" % (vWm, vWt))
    e("    s_mul_i32 s3, s74, 768")
    e("    s_add_u32 s3, s3, %d" % WB)
    e("    v_lshl_add_u32 v%d, v%d, 3, v%d" % (vWl, vT, vU))
    e("    v_mul_u32_u24 v%d, 192, v%d" % (vWl, vWl))
    e("    v_lshl_add_u32 v%d, v%d, 4, v%d" % (vWl, vG, vWl))
    c("v_add_u32 v%d, s3, v%d" % (vWl, vWl), "w_lat row reads")
    c("v_add_u32 v%d, %d, v%d" % (vXr, XB, vLane16), "Wf fragment exchange")
    e("    s_mul_i32 s3, s73, 3072")
    e("    s_lshl_b32 s37, s74, 3")
    e("    s_add_u32 s3, s3, s37")
    e("    v_add_u32 v%d, s3, v%d" % (vXw, vXr))
    e("    v_mul_u32_u24 v%d, 192, v%d" % (vSwr, vJ))
    e("    v_and_b32 v%d, 2, v%d" % (vU, vT))
    e("    v_xor_b32 v%d, v%d, v%d" % (vU, vU, vG))
    e("    v_lshl_add_u32 v%d, v%d, 4, v%d" % (vBrd, vU, vSwr))
    c("v_add_u32 v%d, s33, v%d" % (vBrd, vBrd), "c fragments: unit 12 j + 4 s + (g ^ 2 (j >> 3))")
    e("    v_lshrrev_b32 v%d, 1, v%d" % (vT, vJ))
    e("    v_and_b32 v%d, 6, v%d" % (vPrd, vT))
    e("    v_and_or_b32 v%d, v%d, 1, v%d" % (vPrd, vJ, vPrd))
    e("    v_and_b32 v%d, 2, v%d" % (vU, vJ))
    e("    v_lshl_add_u32 v%d, v%d, 2, v%d" % (vPrd, vU, vPrd))
    e("    v_mul_u32_u24 v%d, 192, v%d" % (vPrd, vPrd))
    e("    v_xor_b32 v%d, v%d, v%d" % (vU, vU, vG))
    e("    v_lshl_add_u32 v%d, v%d, 4, v%d" % (vPrd, vU, vPrd))
    c("v_add_u32 v%d, s33, v%d" % (vPrd, vPrd), "p fragments: item (j >> 1) & 1, pixel 2 (j >> 2) + (j & 1)")
    e("    s_add_u32 s73, s33, %d" % SO)
    e("    v_and_b32 v%d, 3, v%d" % (vT, vT))
    e("    v_xor_b32 v%d, v%d, v%d" % (vT, vT, vG))
    e("    v_lshl_add_u32 v%d, v%d, 4, v%d" % (vSwr, vT, vSwr))
    c("v_add_u32 v%d, s73, v%d" % (vSwr, vSwr), "staging: unit 12 j + 4 s + (g ^ ((j >> 1) & 3))")
    for t in range(3):
        r = vSrd + t
        e("    v_add_u32 v%d, %d, v0" % (r, 64 * t))
        e("    v_mul_u32_u24 v%d, 2731, v%d" % (vU, r))
        e("    v_bfe_u32 v%d, v%d, 16, 2" % (vU, vU))
        e("    v_xor_b32 v%d, v%d, v%d" % (r, r, vU))
        e("    v_lshl_add_u32 v%d, v%d, 4, s73" % (r, r))
    e("    s_and_b32 s13, s2, 1")
    e("    s_lshl_b32 s13, s13, 2")
    e("    s_add_u32 s13, s13, s14")
    e("    s_lshl_b32 s13, s13, 2")
    e("    s_mov_b32 s12, 0xf531a920")
    e("    s_bitcmp1_b32 s2, 1")
    e("    s_cselect_b32 s12, 0xed76cb84, s12")
    c("s_lshr_b32 s13, s12, s13", "pixel group of this wave")
    e("    s_bfe_u32 s12, s13, 0x10003")
    c("s_mul_i32 s12, s12, 24576", "half-row offset in p bytes")
    e("    s_and_b32 s13, s13, 7")
    e("    s_lshl_b32 s13, s13, 4")
    e("    v_mov_b32 v%d, 44" % vJ)
    e("    v_mov_b32 v%d, 42" % vG)
    for n_, (t, isp) in enumerate(((0, 0), (1, 0), (2, 0), (0, 1), (1, 1))):
        e("    v_add_u32 v%d, %d, v0" % (vT, 64 * t))
        e("    v_mul_u32_u24 v%d, 5462, v%d" % (vT, vT))
        e("    v_lshrrev_b32 v%d, 16, v%d" % (vT, vT))
        if isp:
            e("    v_lshlrev_b32 v%d, 1, v%d" % (vT, vT))
        e("    v_add_u32 v%d, s13, v%d" % (vU, vT))
        e("    v_subrev_u32 v%d, 42, v%d" % (vL1, vU))
        e("    v_ashrrev_i32 v%d, 31, v%d" % (vL1, vL1))
        e("    v_bfi_b32 v%d, v%d, 0, v%d" % (vL1, vL1, vJ))
        e("    v_subrev_u32 v%d, 84, v%d" % (vL2, vU))
        e("    v_ashrrev_i32 v%d, 31, v%d" % (vL2, vL2))
        e("    v_bfi_b32 v%d, v%d, 0, v%d" % (vL2, vL2, vG))
        e("    v_add3_u32 v%d, v%d, v%d, v%d" % (vU, vU, vL1, vL2))
        e("    v_xor_b32 v%d, 128, v%d" % (vL1, vU))
        e("    v_sub_u32 v%d, v%d, v%d" % (vU, vU, vT))
        e("    v_sub_u32 v%d, v%d, v%d" % (vL1, vL1, vT))
        e("    v_mul_u32_u24 v%d, %d, v%d" % (vU, 96 if isp else 192, vU))
        e("    v_mul_u32_u24 v%d, %d, v%d" % (vL1, 96 if isp else 192, vL1))
        e("    v_add_u32 v%d, v%d, v%d" % (vE0 + n_, vU, vLane16))
        e("    v_add_u32 v%d, v%d, v%d" % (vE1 + n_, vL1, vLane16))
    for k in range(NST, 8):
        offsets(k, "s12")
    e("    v_mul_u32_u24 v%d, %d, v0" % (vT, rot))
    e("    v_add_u32 v%d, s41, v%d" % (vT, vT))
    e("    v_and_b32 v%d, 31, v%d" % (vT, vT))
    e("    v_lshl_add_u32 v%d, v0, 5, v%d" % (vT, vT))
    e("    v_mul_u32_u24 v%d, 6, v%d" % (vT, vT))
    e("    v_add_u32 v%d, 3, v%d" % (vT, vT))
    e("    v_and_b32 v%d, 64, v%d" % (vU, vT))
    e("    v_lshrrev_b32 v%d, 8, v%d" % (vT, vT))
    e("    v_cmp_ne_u32 vcc, 0, v%d" % vU)
    e("    v_mul_u32_u24 v%d, %d, v%d" % (vA, TSTR, vT))
    e("    s_xor_b32 s3, s74, 1")
    e("    v_mov_b32 v%d, s3" % (vJ + 4))
    e("    s_bitcmp1_b32 s2, 2")
    e("    s_cselect_b32 s3, -1, 0")
    e("    s_xor_b32 s72, s3, vcc_lo")
    e("    s_not_b32 s70, s72")
    e("    s_and_b32 s71, s2, 3")
    e("    s_lshl_b32 s71, s71, 1")
    e("    s_add_u32 s71, s71, 1")
    e("    s_mov_b32 s68, 0x%x" % M)
    e("    s_mov_b32 s69, 0")

    e("    s_waitcnt vmcnt(%d)" % (pts[0] + 1))
    e("    s_cmp_eq_u32 s75, 2")
    e("    s_cbranch_scc1 L_wok")
    e("    s_waitcnt vmcnt(%d)" % pts[0])
    e("    s_cmp_eq_u32 s75, 1")
    e("    s_cbranch_scc1 L_wok")
    e("    s_waitcnt vmcnt(%d)" % wtail)
    e("L_wok:")
    e("    s_barrier")
    stp(2)

    def tr_off(mt, s, hh):
        return (32 * s + 4 * hh) * 192 + 64 * (mt >> 1) + 8 * (mt & 1)

    def mine(i):
        for s in range(3):
            for hh in range(2):
                r = vW2t + (i * 3 + s) * 4 + 2 * hh
                ds("ds_read_b64_tr_b16 v[%d:%d], v%d offset:%d" % (r, r + 1, vWm, tr_off(2 * i, s, hh)), "m%d" % i)

    full = [(mt, s, hh) for mt in range(6) for s in range(3) for hh in range(2)]

    def w2_reads(n):
        for _ in range(min(n, len(full))):
            mt, s, hh = full.pop(0)
            r = aW2 + (mt * 3 + s) * 4 + 2 * hh
            ds("ds_read_b64_tr_b16 a[%d:%d], v%d offset:%d" % (r, r + 1, vWt, tr_off(mt, s, hh)), "w2")

    def wf_out(i, s):
        d = vWa + (i * 3 + s) * 4
        o = vWo + (i * 3 + s) * 2
        e("    v_cvt_pk_bf16_f32 v%d, v%d, v%d" % (o, d, d + 1))
        e("    v_cvt_pk_bf16_f32 v%d, v%d, v%d" % (o + 1, d + 2, d + 3))
        ds("ds_write_b64 v%d, v[%d:%d] offset:%d" % (vXw, o, o + 1, 1024 * (6 * i + s)), "x")

    def point(i):
        if rdpos == i:
            table_load()
        issue_to(pts[i])

    mine(0)
    for s in range(3):
        for ks in range(3):
            ds("ds_read_b128 %s, v%d offset:%d" % (q(vWlF + (s * 3 + ks) * 4), vWl, 32 * s * 192 + 64 * ks), "l%d" % s)
    point(1)
    mine(1)
    mine(2)
    for i in range(3):
        for s in range(3):
            wait_lg("l%d" % s, "m%d" % i)
            for ks in range(3):
                d = vWa + (i * 3 + s) * 4
                e("    v_mfma_f32_16x16x32_bf16 %s, %s, %s, %s" % (
                    q(d), q(vWlF + (s * 3 + ks) * 4), q(vW2t + (i * 3 + ks) * 4), "0" if ks == 0 else q(d)))
                if i:
                    w2_reads(1)
            if i:
                wf_out(i - 1, s)
        point(2 + i)
    w2_reads(6)
    for s in range(3):
        wf_out(2, s)
    point(5)
    wait_lg("x")
    e("    s_barrier")
    stp(3)
    assert max(pts) <= first_op[NS]

    def wf_read(f):
        ds("ds_read_b128 %s, v%d offset:%d" % (q(aWf + 4 * f, "a"), vXr, 1024 * f), "wf")

    def frag_reads(h):
        if h in (0, 7, 15) and not (dbgout and h == 7):
            stp({0: 4, 7: 5, 15: 6}[h])
        if h & 3 == 0:
            for s in range(3):
                ds("ds_read_b128 %s, v%d offset:%d" % (q(vP + 4 * s), vPrd, PO + ((h >> 1) % 4) * 1536 + 64 * s), "p")
        for s in range(3):
            ds("ds_read_b128 %s, v%d offset:%d" % (q(vB + 4 * s), vBrd, (h % NS) * 3072 + 64 * s), "b")

    def mfma_block(h, ms, fill):
        for n, m in enumerate(ms, 1):
            e("    " + m)
            if dups:
                p_ = m.split(", ")
                lvl = int(dups[h])
                for _ in range(lvl // 2 + ((lvl & 1) if n & 1 else 0)):
                    e("    v_mfma_f32_16x16x32_bf16 v[216:219], %s, %s, 0" % (p_[1], p_[2]))
            for f in fill.get(n, []):
                f()

    def cvt_write(sp):
        o, a = vO + 4 * sp, vAcc + 8 * sp
        r = [lambda i=i: e("    v_cvt_pk_bf16_f32 v%d, v%d, v%d" % (o + i, a + 2 * i, a + 2 * i + 1)) for i in range(4)]
        r.append(lambda: ds("ds_write_b128 v%d, %s offset:%d" % (vSwr, q(o), 64 * sp), "s"))
        return r

    def widen(i, perm):
        e("    v_mov_b32_dpp v%d, v%d quad_perm:%s row_mask:0xf bank_mask:0xf" % (vQx + i, vQ + i, perm))

    order = [(mt, s) for mt in range(6) for s in range(3)]
    for h in range(16):
        k, di = h >> 1, h & 1
        e("; ---- step %d: item %d, row %d" % (h, k, di))
        if h == 0:
            w2_reads(99)
            for f in range(wfpre):
                wf_read(f)
            wait_vm("h%d" % ew0)
            issue_to(pts[6])
        if "%x" % h in bar and barpos == 0:
            e("    s_barrier")
        wait_vm("h%d" % h)
        frag_reads(h)
        assert int(taper[h]) < NS
        issue_to(first_op[min(16, h + int(taper[h]) + 1)])
        if h & 3 == 0:
            wait_lg("w2", "p")
            fill = {}
            if h == 0:
                for f in range(wfpre, 18):
                    fill.setdefault(1 + (f - wfpre) * 2 // 3, []).append(lambda f=f: wf_read(f))
            for i in range(12):
                fill.setdefault(12 + i // 2, []).append(lambda i=i: widen(i, "[0,0,1,1]"))
            mfma_block(h, ["v_mfma_f32_16x16x32_bf16 %s, %s, %s, %s" % (
                q(vQ + 4 * mt), q(aW2 + (mt * 3 + s) * 4, "a"), q(vP + 4 * s), "0" if s == 0 else q(vQ + 4 * mt))
                for mt, s in order], fill)
            for i in range(12, 24):
                widen(i, "[0,0,1,1]")
        elif di == 0:
            for i in range(24):
                widen(i, "[2,2,3,3]")
        wait_lg("b", "wf")
        fill = {13 + n: [f] for n, f in enumerate(cvt_write(0))}
        mfma_block(h, ["v_mfma_f32_16x16x32_bf16 %s, %s, %s, %s" % (
            q(vAcc + 4 * mt), q(aWf + (mt * 3 + s) * 4, "a"), q(vB + 4 * s),
            q(vQx + 4 * mt) if s == 0 else q(vAcc + 4 * mt)) for mt, s in order], fill)
        for f in cvt_write(1):
            f()
        if di:
            e("    s_add_u32 s32, s%d, 98304" % (sC + k))
        else:
            e("    s_nop 0")
        for f in cvt_write(2):
            f()
        for t in range(3):
            ds("ds_read_b128 %s, v%d" % (q(vR + 4 * t), vSrd + t), "r%d" % t)
        if "%x" % h in bar and barpos == 1:
            e("    s_barrier")
        for t in range(3):
            wait_lg("r%d" % t)
            e("    buffer_store_dwordx4 %s, v%d, s[28:31], s%d offen offset:%d %s" % (
                q(vR + 4 * t), vSt + 3 * (k % 4) + t if k >= NST else vLane16, 32 if di else sC + k, 1024 * t,
                st if h < wbfrom else ""))
            vm.append("o")

    if stamp:
        e("    s_waitcnt vmcnt(0)")
        e("    s_memtime s[46:47]")
        stp(7)
        e("    s_sub_u32 s50, s46, s44")
        e("    s_mov_b32 s51, 0x7000")
        e("    s_mov_b32 s66, 0x1000000")
        e("    s_mov_b32 s67, 0x20000")
        e("    s_lshl_b32 s3, s2, 2")
        e("    s_add_u32 s3, s3, s14")
        e("    s_lshl_b32 s3, s3, 6")
        for i in range(16):
            e("    v_mov_b32 v%d, s%d" % (32 + i, 48 + i))
        e("    v_mov_b32 v1, 0")
        e("    s_mov_b64 exec, 1")
        for i in range(4):
            e("    buffer_store_dwordx4 v[%d:%d], v1, s[64:67], s3 offen offset:%d" % (32 + 4 * i, 35 + 4 * i, 16 * i))
    e("L_end:")
    e("    s_endpgm")
    table_slow()

    out = HEADER + ("; STAMP build\n" if stamp else "")
    out += "; @launch grid=(256,1,1) block=(256,1,1) lds=%d\n" % LDS
    out += DOC
    out += '.amdgcn_target "amdgcn-amd-amdhsa--gfx950"\n.text\n.globl %s_kernel\n.p2align 8\n.type %s_kernel,@function\n' % (NAME, NAME)
    out += "\n".join(x.rstrip() for x in L) + "\n"
    out += """.section .rodata,"a"
.p2align 6
.amdhsa_kernel %s_kernel
  .amdhsa_next_free_vgpr %d
  .amdhsa_next_free_sgpr 96
  .amdhsa_accum_offset %d
  .amdhsa_group_segment_fixed_size 0
  .amdhsa_kernarg_size 56
  .amdhsa_user_sgpr_count 2
  .amdhsa_user_sgpr_kernarg_segment_ptr 1
  .amdhsa_system_sgpr_workgroup_id_x 1
.end_amdhsa_kernel
""" % (NAME, NV + 144, NV)
    return out


if __name__ == "__main__":
    import inspect
    ap = argparse.ArgumentParser()
    ap.add_argument("-o", default="cdna_kernels/%s.s" % NAME)
    for k, p in inspect.signature(gen).parameters.items():
        if isinstance(p.default, bool):
            ap.add_argument("--" + k, action="store_true")
        else:
            ap.add_argument("--" + k, type=type(p.default), default=p.default)
    a = vars(ap.parse_args())
    o = a.pop("o")
    open(o, "w").write(gen(**a))
```

```python
import argparse

NAME = "standalone__detection_seg_fpn_lateral__vision"
HEADER = open("cdna_kernels/%s.s.ref" % NAME).read().split("; Override launch")[0]
C_BYTES, P_BYTES, W_BYTES = 50331648, 12582912, 18432

DOC = """;
;
; (2 bits per vote: 01 / 10 vote, 11 abstain). A table word is used only when all its votes are set, and a complete
"""


def gen(ld="nt", st="sc1", pat="wddwwdwwddwwdww", pts="10,13,13,16,16,16,23", taper="4444433333222111",
        rot=5, bar="48c", wbfrom=15, rdpos=3, tries=40, ew0=2, spread=3, cfirst=1, wfpre=0, barpos=0, cpf=0,
        stamp=False, dbgout=False, force=0, dups=""):
    L = []
    e = L.append
    pts = [int(x) for x in pts.split(",")]
    NST, SLOTS, TSTR = 2, 8, 48
    M = 0x5555

    NS = 5
    PO = NS * 3072
    SO = PO + 4 * 1536
    WAVE = SO + 3072
    XB = 4 * WAVE
    WB = XB + W_BYTES
    LDS = WB + 2 * W_BYTES

    aWf, aW2 = 0, 72
    vLane16, vSw1, vSw2, vBrd, vPrd, vSwr, vHi32, vSrd = 1, 2, 3, 4, 5, 6, 7, 8
    vWt, vWl, vXw, vXr, vT, vU, vWm, vJ, vG, vA, vD = 11, 12, 13, 14, 15, 16, 17, 18, 19, 20, 21
    vB, vP, vQ, vQx, vAcc, vO, vR = 24, 36, 48, 72, 96, 120, 132
    vWlF, vW2t, vWa, vWo = 132, 48, 96, 168
    vE0, vE1, vSt, vL1, vL2, vPa = 186, 191, 196, 208, 209, 210
    NV = 220
    sC, sP = 76, 84

    vm, lg = [], []

    def q(r, f="v"):
        return "%s[%d:%d]" % (f, r, r + 3)

    def c(text, note):
        e("    %-52s ; %s" % (text, note))

    def count_after(lst, tag):
        idx = [i for i, t in enumerate(lst) if t == tag]
        return None if not idx else len(lst) - 1 - idx[-1]

    def wait_vm(tag):
        n = count_after(vm, tag)
        if n is not None:
            assert n < 63
            e("    s_waitcnt vmcnt(%d)" % n)
            del vm[:len(vm) - n]

    def wait_lg(*tags):
        ns = [n for n in (count_after(lg, t) for t in tags) if n is not None]
        if ns:
            n = min(min(ns), 14)
            e("    s_waitcnt lgkmcnt(%d)" % n)
            del lg[:len(lg) - n]

    def ds(text, tag):
        e("    " + text)
        lg.append(tag)

    def stp(i):
        if stamp:
            e("    s_memrealtime s[%d:%d]" % (48 + 2 * i, 49 + 2 * i))
            e("    s_waitcnt lgkmcnt(0)")
            del lg[:]

    def row_of(k, dst):
        if k == 0:
            e("    s_mul_i32 %s, s41, 49152" % dst)
            return
        e("    s_add_u32 s3, s41, %d" % ((rot * k) & 31))
        e("    s_and_b32 s3, s3, 31")
        e("    s_add_u32 s3, s3, %d" % (32 * k))
        e("    s_mul_i32 %s, s3, 49152" % dst)

    def offsets(k, col):
        row_of(k, "s37")
        e("    s_add_u32 s%d, s37, %s" % (sP + k, col))
        e("    s_add_u32 s3, s37, s%d" % (sP + k))
        e("    s_lshl_b32 s%d, s3, 1" % (sC + k))

    e("%s_kernel:" % NAME)
    e("    s_cmp_ge_u32 s2, 256")
    e("    s_cbranch_scc1 L_end")
    if stamp:
        e("    s_memrealtime s[48:49]")
        e("    s_memtime s[44:45]")
        e("    s_load_dwordx2 s[64:65], s[0:1], 48")
    c("s_load_dwordx4 s[8:11], s[0:1], 16", "w_lat, w_out")
    c("s_load_dwordx2 s[20:21], s[0:1], 8", "p")
    c("s_load_dwordx2 s[16:17], s[0:1], 0", "c")
    c("s_load_dwordx2 s[28:29], s[0:1], 32", "out")
    c("s_load_dwordx2 s[92:93], s[0:1], 40", "vote table")
    c("s_memtime s[12:13]", "seed: picks the cache lines the probe races")
    if cpf:
        e("    s_lshr_b32 s3, s2, %d" % (3 if cpf == 1 else 4))
        e("    s_cmp_lg_u32 s3, %d" % (6 if cpf == 1 else 3))
        e("    s_cbranch_scc1 L_nopf")
        e("    s_getpc_b64 s[4:5]")
        e("    v_lshlrev_b32 v23, 6, v0")
        e("    v_min_u32 v23, L_tab_slow - %s_kernel - 64, v23" % NAME)
        c("global_load_dword v23, v23, s[4:5]", "pull the kernel's code into this XCD's L2")
        e("L_nopf:")
    e("    v_readfirstlane_b32 s14, v0")
    e("    v_and_b32 v0, 63, v0")
    e("    v_lshlrev_b32 v%d, 4, v0" % vLane16)
    c("s_lshr_b32 s14, s14, 6", "wave")
    c("s_and_b32 s71, s2, 7", "column class / vote slot")
    e("    s_lshl_b32 s15, s14, 3")
    e("    s_add_u32 s15, s15, s71")
    c("s_mul_i32 s15, s15, 1536", "column offset of the two fixed slices, in p bytes")
    c("s_lshr_b32 s41, s2, 3", "row group")
    c("s_mul_i32 s33, s14, %d" % WAVE, "wave LDS base")
    e("    s_and_b32 s74, s14, 1")
    e("    s_mul_i32 s34, s74, 9216")
    e("    s_mul_i32 s35, s14, 9216")
    e("    s_add_u32 s35, s35, %d" % WB)
    offsets(0, "s15")
    offsets(1, "s15")
    for r, v in ((18, C_BYTES), (22, P_BYTES), (26, W_BYTES), (30, C_BYTES), (94, 5 * TSTR + 4)):
        e("    s_mov_b32 s%d, %d" % (r, v))
        e("    s_mov_b32 s%d, 0x20000" % (r + 1))
    e("    s_mov_b32 s75, 0")
    e("    v_xor_b32 v%d, 32, v%d" % (vSw2, vLane16))
    e("    v_and_b32 v%d, 32, v0" % vHi32)
    e("    v_xor_b32 v%d, v%d, v%d" % (vSw1, vHi32, vLane16))
    e("    s_getreg_b32 s69, hwreg(HW_REG_XCC_ID, 0, 3)")
    e("    s_lshr_b32 s3, s71, 1")
    e("    s_xor_b32 s72, s3, s71")
    c("s_and_b32 s72, s72, 1", "phase tested by this slot")
    e("    s_lshr_b32 s37, s69, 2")
    e("    s_xor_b32 s3, s3, s37")
    e("    s_and_b32 s3, s3, 1")
    c("s_lshl_b32 s3, s3, 13", "address bit 13 that is near if that phase holds")
    e("    s_and_b32 s37, s71, 3")
    e("    s_lshl_b32 s68, s41, 2")
    e("    s_or_b32 s68, s68, s37")
    e("    s_cmp_eq_u32 s41, 1")
    e("    s_cselect_b32 s37, 2, 0")
    e("    s_or_b32 s68, s68, s37")
    e("    s_lshl_b32 s68, s68, 21")
    c("s_or_b32 s68, s68, s3", "probed page of segment s41")
    e("    s_mov_b32 m0, s35")
    e("    s_mov_b32 s36, s34")
    e("    s_sub_u32 s3, s41, 1")
    e("    s_cmp_lt_u32 s3, 5")
    e("    s_cbranch_scc1 L_prober")
    e("    s_cmp_lt_u32 s14, 2")
    e("    s_waitcnt lgkmcnt(0)")
    e("    s_cselect_b64 s[24:25], s[8:9], s[10:11]")

    def op_w(t):
        g0 = (t // 4) * 4096
        return ("w", "w%d" % g0, ["    s_add_u32 m0, s35, %d" % g0, "    s_add_u32 s36, s34, %d" % g0],
                ["    buffer_load_dwordx4 v%d, s[24:27], s36 offen offset:%d lds" % (vLane16, 1024 * (t % 4))])

    def ops_p(k):
        if k >= NST:
            pa, pb = vPa + 2 * (k & 1), vPa + 2 * (k & 1) + 1
        else:
            pa = pb = vSw2 if k & 1 else vLane16
        pre_ = ["    s_add_u32 m0, s33, %d" % (PO + (k % 4) * 1536), "    s_nop 0"]
        return [["p%d" % k, pre_, ["    buffer_load_dwordx4 v%d, s[20:23], s%d offen %s lds" % (pa, sP + k, ld)]],
                ["p%d" % k, pre_, ["    s_mov_b32 exec_hi, 0",
                                   "    buffer_load_dwordx4 v%d, s[20:23], s%d offen offset:1024 %s lds" % (pb, sP + k, ld),
                                   "    s_mov_b32 exec_hi, -1"]]]

    def ops_c(h):
        k, di = h >> 1, h & 1
        cv = (vSt + 3 * (k % 4), vL1, vL2) if k >= NST else (vLane16, vSw1, vSw2)
        pre_ = ["    s_add_u32 m0, s33, %d" % ((h % NS) * 3072),
                "    s_nop 0" if di == 0 else "    s_add_u32 s43, s%d, 98304" % (sC + k)]
        return [["c%d" % h, pre_, ["    buffer_load_dwordx4 v%d, s[16:19], s%d offen offset:%d %s lds" % (
            v, 43 if di else sC + k, 1024 * t, ld)]] for t, v in enumerate(cv)]

    per = [ops_c(h) for h in range(16)]
    for h in range(0, 16, 4):
        pp = ops_p(h >> 1) + ops_p((h >> 1) + 1)
        if h > 2 * NST:
            for n in range(spread):
                per[h - spread + n].append(pp.pop(0))
        per[h] = per[h] + pp if (cfirst and h == 2 * NST) else pp + per[h]
    data = [("h%d" % h,) + tuple(o) for h in range(16) for o in per[h]]
    first_op = [next(i for i, o in enumerate(data) if o[0] == "h%d" % h) for h in range(16)] + [len(data)]
    W = [op_w(t) for t in range(9)]
    m0key = ["w0"]
    nd = [0]
    ready = set()

    def emit(ops):
        for tag, kk, pre_, ins in ops:
            if kk != m0key[0]:
                for x in pre_:
                    e(x)
            m0key[0] = kk
            for x in ins:
                e(x)
            vm.append(tag)

    def lane_offsets(kind, k):
        e("    s_bitcmp1_b32 s38, %d" % k)
        e("    s_cselect_b64 vcc, -1, 0")
        if kind == "c":
            st_ = vSt + 3 * (k % 4)
            for t in range(3):
                e("    v_cndmask_b32 v%d, v%d, v%d, vcc" % (st_ + t, vE0 + t, vE1 + t))
            e("    v_xor_b32 v%d, v%d, v%d" % (vL1, vHi32, st_ + 1))
            e("    v_xor_b32 v%d, 32, v%d" % (vL2, st_ + 2))
        else:
            for t in range(2):
                r = vPa + 2 * (k & 1) + t
                e("    v_cndmask_b32 v%d, v%d, v%d, vcc" % (r, vE0 + 3 + t, vE1 + 3 + t))
                if k & 1:
                    e("    v_xor_b32 v%d, 32, v%d" % (r, r))

    def issue_one():
        key = data[nd[0]][1]
        k = int(key[1:]) if key[0] == "p" else int(key[1:]) >> 1
        if k >= NST:
            if "tab" not in ready:
                ready.add("tab")
                table_use()
            if (key[0], k) not in ready:
                ready.add((key[0], k))
                lane_offsets(key[0], k)
        emit([data[nd[0]]])
        nd[0] += 1

    def issue_to(n):
        while nd[0] < n:
            issue_one()

    def table_load():
        c("buffer_load_dword v%d, v%d, s[92:95], 0 offen" % (vD, vA), "lane 0: die map, lane k: segment of item k")
        vm.append("tab")

    def table_use():
        wait_vm("tab")
        e("L_tab:")
        e("    v_lshrrev_b32 v%d, 1, v%d" % (vT, vD))
        e("    v_readfirstlane_b32 s37, v%d" % vD)
        e("    v_or_b32 v%d, v%d, v%d" % (vU, vT, vD))
        e("    v_and_b32 v%d, s68, v%d" % (vJ, vD))
        e("    v_and_b32 v%d, s68, v%d" % (vU, vU))
        e("    v_and_b32 v%d, s68, v%d" % (vG, vT))
        e("    v_cmp_ne_u32 s[4:5], s68, v%d" % vU)
        e("    v_bcnt_u32_b32 v%d, v%d, v%d" % (vJ, vJ, vJ + 4))
        e("    v_bcnt_u32_b32 v%d, v%d, 0" % (vG, vG))
        e("    s_bitcmp1_b32 s37, s71")
        c("v_cmp_ge_u32 vcc, v%d, v%d" % (vG, vJ), "majority phase; a tie alternates by wave")
        e("    s_cselect_b32 s38, s70, s72")
        e("    s_and_b32 s3, s4, 0xfd")
        e("    s_cbranch_scc1 L_tab_slow")
        c("s_xor_b32 s38, s38, vcc_lo", "bit k: half taken by this wave in item k")
        if dbgout:
            e("    s_lshl_b32 s58, s69, 8")
            e("    s_and_b32 s3, vcc_lo, 0xfc")
            e("    s_lshr_b32 s3, s3, 2")
            e("    s_or_b32 s58, s58, s3")
            e("    s_mov_b32 s59, 0")

    def table_slow():
        e("L_tab_slow:")
        e("    s_add_u32 s69, s69, 1")
        e("    s_cmp_le_u32 s69, %d" % tries)
        e("    s_cbranch_scc1 L_tab_reload")
        e("    v_xor_b32 v%d, s68, v%d" % (vU, vU))
        e("    v_lshl_add_u32 v%d, v%d, 1, v%d" % (vU, vU, vU))
        e("    v_or_b32 v%d, v%d, v%d" % (vJ, vU, vD))
        e("    v_mov_b32 v%d, v%d" % (vG, vD))
        e("    s_mov_b32 exec_lo, s3")
        e("    s_mov_b32 exec_hi, 0")
        c("buffer_atomic_cmpswap v[%d:%d], v%d, s[92:95], 0 offen sc1" % (vJ, vG, vA), "close missing votes")
        e("    s_mov_b64 exec, -1")
        e("    s_waitcnt vmcnt(0)")
        e("L_tab_reload:")
        e("    buffer_load_dword v%d, v%d, s[92:95], 0 offen sc0 sc1" % (vD, vA))
        e("    s_waitcnt vmcnt(0)")
        e("    s_branch L_tab")

    def prober_path():
        e("L_prober:")
        e("    s_mov_b32 s75, 1")
        e("    s_cmp_lt_u32 s14, 2")
        e("    s_waitcnt lgkmcnt(0)")
        e("    s_cselect_b64 s[24:25], s[8:9], s[10:11]")
        e("    s_cmp_lg_u32 s14, 0")
        e("    s_cbranch_scc1 L_pw")
        e("    s_mul_i32 s37, s12, 0x9e3779b1")
        e("    s_lshr_b32 s37, s37, 11")
        e("    s_and_b32 s37, s37, 0x1fdf80")
        e("    s_or_b32 s68, s68, s37")
        e("    s_mov_b64 exec, 1")
        e("    s_xor_b32 s37, s68, 8192")
        e("    buffer_load_dword v%d, v0, s[16:19], s68 offen nt" % vD)
        e("    buffer_load_dword v%d, v0, s[16:19], s37 offen nt" % vD)
        e("    s_mov_b64 exec, -1")
        e("L_pw:")
        e("    s_barrier")
        m0key[0] = "w0"
        emit(W)
        e("    s_cmp_lg_u32 s14, 0")
        e("    s_cbranch_scc1 L_pd")
        e("    s_sub_u32 s69, s69, s2")
        e("    s_and_b32 s69, s69, 7")
        e("    s_lshl_b32 s69, s69, 1")
        e("    s_lshr_b32 s69, 0x55aa55, s69")
        c("s_or_b32 s69, s69, 0xff00", "die of column classes 0..3 under this placement")
        e("    s_and_b32 s69, s69, 0xffff")
        e("    s_mul_i32 s70, s41, %d" % TSTR)
        e("    s_lshl_b32 s37, s71, 1")
        e("    s_add_u32 s72, s72, 1")
        e("    v_mov_b32 v%d, 0" % vA)
        e("    v_mov_b32 v%d, s69" % vB)
        e("    v_writelane_b32 v%d, s70, 0" % vA)
        e("    s_waitcnt vmcnt(10)")
        c("s_getreg_b32 s3, hwreg(HW_REG_IB_STS, 0, 4)", "vm_cnt: second load still in flight?")
        e("    s_cmp_eq_u32 s3, 10")
        e("    s_cselect_b32 s3, s72, 3")
        e("    s_lshl_b32 s3, s3, s37")
        if force == 1:
            e("    s_mov_b32 s3, 0")
        if force == 2:
            e("    s_bitcmp1_b32 s12, 4")
            e("    s_cselect_b32 s3, 0, s3")
        if force in (3, 5):
            e("    s_bfe_u32 s3, s12, 0x10005")
            e("    s_add_u32 s3, s3, 1")
            e("    s_lshl_b32 s3, s3, s37")
        if force == 3:
            e("    s_bfe_u32 s36, s12, 0x50004")
            e("L_late:")
            e("    s_sleep 6")
            e("    s_sub_u32 s36, s36, 1")
            e("    s_cbranch_scc0 L_late")
        e("    s_cmp_eq_u32 s2, %d" % (SLOTS if force != 4 else 999))
        e("    v_writelane_b32 v%d, s3, 0" % vB)
        e("    s_cselect_b64 exec, 3, 1")
        e("    buffer_atomic_or v%d, v%d, s[92:95], 0 offen sc1" % (vB, vA))
        e("    s_mov_b32 s75, 2")
        e("    s_mov_b64 exec, -1")
        e("L_pd:")
        e("    s_barrier")
        emit(data[:pts[0]])

    wi = 0
    for ch in pat:
        if ch == "w":
            emit([W[wi]]); wi += 1
        else:
            issue_one()
    assert wi == 9 and nd[0] <= pts[0] <= first_op[2 * NST]
    issue_to(pts[0])
    e("    s_branch L_started")
    keep = list(vm)
    prober_path()
    vm[:] = keep
    e("L_started:")
    m0key[0] = None
    wtail = count_after(vm, "w")
    vm[:] = [t for t in vm if t != "w"]

    e("    v_and_b32 v%d, 15, v0" % vJ)
    e("    v_lshrrev_b32 v%d, 4, v0" % vG)
    e("    v_lshrrev_b32 v%d, 2, v%d" % (vT, vJ))
    e("    v_and_b32 v%d, 3, v%d" % (vU, vJ))
    e("    v_lshl_add_u32 v%d, v%d, 3, v%d" % (vWt, vG, vT))
    e("    v_mul_u32_u24 v%d, 192, v%d" % (vWt, vWt))
    e("    v_lshl_add_u32 v%d, v%d, 4, v%d" % (vWt, vU, vWt))
    c("v_add_u32 v%d, %d, v%d" % (vWt, WB + W_BYTES, vWt), "w_out transpose reads")
    e("    s_lshr_b32 s73, s14, 1")
    e("    s_lshl_b32 s3, s73, 3")
    e("    v_add_u32 v%d, s3, v%d" % (vWm, vWt))
    e("    s_mul_i32 s3, s74, 768")
    e("    s_add_u32 s3, s3, %d" % WB)
    e("    v_lshl_add_u32 v%d, v%d, 3, v%d" % (vWl, vT, vU))
    e("    v_mul_u32_u24 v%d, 192, v%d" % (vWl, vWl))
    e("    v_lshl_add_u32 v%d, v%d, 4, v%d" % (vWl, vG, vWl))
    c("v_add_u32 v%d, s3, v%d" % (vWl, vWl), "w_lat row reads")
    c("v_add_u32 v%d, %d, v%d" % (vXr, XB, vLane16), "Wf fragment exchange")
    e("    s_mul_i32 s3, s73, 3072")
    e("    s_lshl_b32 s37, s74, 3")
    e("    s_add_u32 s3, s3, s37")
    e("    v_add_u32 v%d, s3, v%d" % (vXw, vXr))
    e("    v_mul_u32_u24 v%d, 192, v%d" % (vSwr, vJ))
    e("    v_and_b32 v%d, 2, v%d" % (vU, vT))
    e("    v_xor_b32 v%d, v%d, v%d" % (vU, vU, vG))
    e("    v_lshl_add_u32 v%d, v%d, 4, v%d" % (vBrd, vU, vSwr))
    c("v_add_u32 v%d, s33, v%d" % (vBrd, vBrd), "c fragments: unit 12 j + 4 s + (g ^ 2 (j >> 3))")
    e("    v_lshrrev_b32 v%d, 1, v%d" % (vT, vJ))
    e("    v_and_b32 v%d, 6, v%d" % (vPrd, vT))
    e("    v_and_or_b32 v%d, v%d, 1, v%d" % (vPrd, vJ, vPrd))
    e("    v_and_b32 v%d, 2, v%d" % (vU, vJ))
    e("    v_lshl_add_u32 v%d, v%d, 2, v%d" % (vPrd, vU, vPrd))
    e("    v_mul_u32_u24 v%d, 192, v%d" % (vPrd, vPrd))
    e("    v_xor_b32 v%d, v%d, v%d" % (vU, vU, vG))
    e("    v_lshl_add_u32 v%d, v%d, 4, v%d" % (vPrd, vU, vPrd))
    c("v_add_u32 v%d, s33, v%d" % (vPrd, vPrd), "p fragments: item (j >> 1) & 1, pixel 2 (j >> 2) + (j & 1)")
    e("    s_add_u32 s73, s33, %d" % SO)
    e("    v_and_b32 v%d, 3, v%d" % (vT, vT))
    e("    v_xor_b32 v%d, v%d, v%d" % (vT, vT, vG))
    e("    v_lshl_add_u32 v%d, v%d, 4, v%d" % (vSwr, vT, vSwr))
    c("v_add_u32 v%d, s73, v%d" % (vSwr, vSwr), "staging: unit 12 j + 4 s + (g ^ ((j >> 1) & 3))")
    for t in range(3):
        r = vSrd + t
        e("    v_add_u32 v%d, %d, v0" % (r, 64 * t))
        e("    v_mul_u32_u24 v%d, 2731, v%d" % (vU, r))
        e("    v_bfe_u32 v%d, v%d, 16, 2" % (vU, vU))
        e("    v_xor_b32 v%d, v%d, v%d" % (r, r, vU))
        e("    v_lshl_add_u32 v%d, v%d, 4, s73" % (r, r))
    e("    s_and_b32 s13, s2, 1")
    e("    s_lshl_b32 s13, s13, 2")
    e("    s_add_u32 s13, s13, s14")
    e("    s_lshl_b32 s13, s13, 2")
    e("    s_mov_b32 s12, 0xf531a920")
    e("    s_bitcmp1_b32 s2, 1")
    e("    s_cselect_b32 s12, 0xed76cb84, s12")
    c("s_lshr_b32 s13, s12, s13", "pixel group of this wave")
    e("    s_bfe_u32 s12, s13, 0x10003")
    c("s_mul_i32 s12, s12, 24576", "half-row offset in p bytes")
    e("    s_and_b32 s13, s13, 7")
    e("    s_lshl_b32 s13, s13, 4")
    e("    v_mov_b32 v%d, 44" % vJ)
    e("    v_mov_b32 v%d, 42" % vG)
    for n_, (t, isp) in enumerate(((0, 0), (1, 0), (2, 0), (0, 1), (1, 1))):
        e("    v_add_u32 v%d, %d, v0" % (vT, 64 * t))
        e("    v_mul_u32_u24 v%d, 5462, v%d" % (vT, vT))
        e("    v_lshrrev_b32 v%d, 16, v%d" % (vT, vT))
        if isp:
            e("    v_lshlrev_b32 v%d, 1, v%d" % (vT, vT))
        e("    v_add_u32 v%d, s13, v%d" % (vU, vT))
        e("    v_subrev_u32 v%d, 42, v%d" % (vL1, vU))
        e("    v_ashrrev_i32 v%d, 31, v%d" % (vL1, vL1))
        e("    v_bfi_b32 v%d, v%d, 0, v%d" % (vL1, vL1, vJ))
        e("    v_subrev_u32 v%d, 84, v%d" % (vL2, vU))
        e("    v_ashrrev_i32 v%d, 31, v%d" % (vL2, vL2))
        e("    v_bfi_b32 v%d, v%d, 0, v%d" % (vL2, vL2, vG))
        e("    v_add3_u32 v%d, v%d, v%d, v%d" % (vU, vU, vL1, vL2))
        e("    v_xor_b32 v%d, 128, v%d" % (vL1, vU))
        e("    v_sub_u32 v%d, v%d, v%d" % (vU, vU, vT))
        e("    v_sub_u32 v%d, v%d, v%d" % (vL1, vL1, vT))
        e("    v_mul_u32_u24 v%d, %d, v%d" % (vU, 96 if isp else 192, vU))
        e("    v_mul_u32_u24 v%d, %d, v%d" % (vL1, 96 if isp else 192, vL1))
        e("    v_add_u32 v%d, v%d, v%d" % (vE0 + n_, vU, vLane16))
        e("    v_add_u32 v%d, v%d, v%d" % (vE1 + n_, vL1, vLane16))
    for k in range(NST, 8):
        offsets(k, "s12")
    e("    v_mul_u32_u24 v%d, %d, v0" % (vT, rot))
    e("    v_add_u32 v%d, s41, v%d" % (vT, vT))
    e("    v_and_b32 v%d, 31, v%d" % (vT, vT))
    e("    v_lshl_add_u32 v%d, v0, 5, v%d" % (vT, vT))
    e("    v_mul_u32_u24 v%d, 6, v%d" % (vT, vT))
    e("    v_add_u32 v%d, 3, v%d" % (vT, vT))
    e("    v_and_b32 v%d, 64, v%d" % (vU, vT))
    e("    v_lshrrev_b32 v%d, 8, v%d" % (vT, vT))
    e("    v_cmp_ne_u32 vcc, 0, v%d" % vU)
    e("    v_mul_u32_u24 v%d, %d, v%d" % (vA, TSTR, vT))
    e("    s_xor_b32 s3, s74, 1")
    e("    v_mov_b32 v%d, s3" % (vJ + 4))
    e("    s_bitcmp1_b32 s2, 2")
    e("    s_cselect_b32 s3, -1, 0")
    e("    s_xor_b32 s72, s3, vcc_lo")
    e("    s_not_b32 s70, s72")
    e("    s_and_b32 s71, s2, 3")
    e("    s_lshl_b32 s71, s71, 1")
    e("    s_add_u32 s71, s71, 1")
    e("    s_mov_b32 s68, 0x%x" % M)
    e("    s_mov_b32 s69, 0")

    e("    s_waitcnt vmcnt(%d)" % (pts[0] + 1))
    e("    s_cmp_eq_u32 s75, 2")
    e("    s_cbranch_scc1 L_wok")
    e("    s_waitcnt vmcnt(%d)" % pts[0])
    e("    s_cmp_eq_u32 s75, 1")
    e("    s_cbranch_scc1 L_wok")
    e("    s_waitcnt vmcnt(%d)" % wtail)
    e("L_wok:")
    e("    s_barrier")
    stp(2)

    def tr_off(mt, s, hh):
        return (32 * s + 4 * hh) * 192 + 64 * (mt >> 1) + 8 * (mt & 1)

    def mine(i):
        for s in range(3):
            for hh in range(2):
                r = vW2t + (i * 3 + s) * 4 + 2 * hh
                ds("ds_read_b64_tr_b16 v[%d:%d], v%d offset:%d" % (r, r + 1, vWm, tr_off(2 * i, s, hh)), "m%d" % i)

    full = [(mt, s, hh) for mt in range(6) for s in range(3) for hh in range(2)]

    def w2_reads(n):
        for _ in range(min(n, len(full))):
            mt, s, hh = full.pop(0)
            r = aW2 + (mt * 3 + s) * 4 + 2 * hh
            ds("ds_read_b64_tr_b16 a[%d:%d], v%d offset:%d" % (r, r + 1, vWt, tr_off(mt, s, hh)), "w2")

    def wf_out(i, s):
        d = vWa + (i * 3 + s) * 4
        o = vWo + (i * 3 + s) * 2
        e("    v_cvt_pk_bf16_f32 v%d, v%d, v%d" % (o, d, d + 1))
        e("    v_cvt_pk_bf16_f32 v%d, v%d, v%d" % (o + 1, d + 2, d + 3))
        ds("ds_write_b64 v%d, v[%d:%d] offset:%d" % (vXw, o, o + 1, 1024 * (6 * i + s)), "x")

    def point(i):
        if rdpos == i:
            table_load()
        issue_to(pts[i])

    mine(0)
    for s in range(3):
        for ks in range(3):
            ds("ds_read_b128 %s, v%d offset:%d" % (q(vWlF + (s * 3 + ks) * 4), vWl, 32 * s * 192 + 64 * ks), "l%d" % s)
    point(1)
    mine(1)
    mine(2)
    for i in range(3):
        for s in range(3):
            wait_lg("l%d" % s, "m%d" % i)
            for ks in range(3):
                d = vWa + (i * 3 + s) * 4
                e("    v_mfma_f32_16x16x32_bf16 %s, %s, %s, %s" % (
                    q(d), q(vWlF + (s * 3 + ks) * 4), q(vW2t + (i * 3 + ks) * 4), "0" if ks == 0 else q(d)))
                if i:
                    w2_reads(1)
            if i:
                wf_out(i - 1, s)
        point(2 + i)
    w2_reads(6)
    for s in range(3):
        wf_out(2, s)
    point(5)
    wait_lg("x")
    e("    s_barrier")
    stp(3)
    assert max(pts) <= first_op[NS]

    def wf_read(f):
        ds("ds_read_b128 %s, v%d offset:%d" % (q(aWf + 4 * f, "a"), vXr, 1024 * f), "wf")

    def frag_reads(h):
        if h in (0, 7, 15) and not (dbgout and h == 7):
            stp({0: 4, 7: 5, 15: 6}[h])
        if h & 3 == 0:
            for s in range(3):
                ds("ds_read_b128 %s, v%d offset:%d" % (q(vP + 4 * s), vPrd, PO + ((h >> 1) % 4) * 1536 + 64 * s), "p")
        for s in range(3):
            ds("ds_read_b128 %s, v%d offset:%d" % (q(vB + 4 * s), vBrd, (h % NS) * 3072 + 64 * s), "b")

    def mfma_block(h, ms, fill):
        for n, m in enumerate(ms, 1):
            e("    " + m)
            if dups:
                p_ = m.split(", ")
                lvl = int(dups[h])
                for _ in range(lvl // 2 + ((lvl & 1) if n & 1 else 0)):
                    e("    v_mfma_f32_16x16x32_bf16 v[216:219], %s, %s, 0" % (p_[1], p_[2]))
            for f in fill.get(n, []):
                f()

    def cvt_write(sp):
        o, a = vO + 4 * sp, vAcc + 8 * sp
        r = [lambda i=i: e("    v_cvt_pk_bf16_f32 v%d, v%d, v%d" % (o + i, a + 2 * i, a + 2 * i + 1)) for i in range(4)]
        r.append(lambda: ds("ds_write_b128 v%d, %s offset:%d" % (vSwr, q(o), 64 * sp), "s"))
        return r

    def widen(i, perm):
        e("    v_mov_b32_dpp v%d, v%d quad_perm:%s row_mask:0xf bank_mask:0xf" % (vQx + i, vQ + i, perm))

    order = [(mt, s) for mt in range(6) for s in range(3)]
    for h in range(16):
        k, di = h >> 1, h & 1
        e("; ---- step %d: item %d, row %d" % (h, k, di))
        if h == 0:
            w2_reads(99)
            for f in range(wfpre):
                wf_read(f)
            wait_vm("h%d" % ew0)
            issue_to(pts[6])
        if "%x" % h in bar and barpos == 0:
            e("    s_barrier")
        wait_vm("h%d" % h)
        frag_reads(h)
        assert int(taper[h]) < NS
        issue_to(first_op[min(16, h + int(taper[h]) + 1)])
        if h & 3 == 0:
            wait_lg("w2", "p")
            fill = {}
            if h == 0:
                for f in range(wfpre, 18):
                    fill.setdefault(1 + (f - wfpre) * 2 // 3, []).append(lambda f=f: wf_read(f))
            for i in range(12):
                fill.setdefault(12 + i // 2, []).append(lambda i=i: widen(i, "[0,0,1,1]"))
            mfma_block(h, ["v_mfma_f32_16x16x32_bf16 %s, %s, %s, %s" % (
                q(vQ + 4 * mt), q(aW2 + (mt * 3 + s) * 4, "a"), q(vP + 4 * s), "0" if s == 0 else q(vQ + 4 * mt))
                for mt, s in order], fill)
            for i in range(12, 24):
                widen(i, "[0,0,1,1]")
        elif di == 0:
            for i in range(24):
                widen(i, "[2,2,3,3]")
        wait_lg("b", "wf")
        fill = {13 + n: [f] for n, f in enumerate(cvt_write(0))}
        mfma_block(h, ["v_mfma_f32_16x16x32_bf16 %s, %s, %s, %s" % (
            q(vAcc + 4 * mt), q(aWf + (mt * 3 + s) * 4, "a"), q(vB + 4 * s),
            q(vQx + 4 * mt) if s == 0 else q(vAcc + 4 * mt)) for mt, s in order], fill)
        for f in cvt_write(1):
            f()
        if di:
            e("    s_add_u32 s32, s%d, 98304" % (sC + k))
        else:
            e("    s_nop 0")
        for f in cvt_write(2):
            f()
        for t in range(3):
            ds("ds_read_b128 %s, v%d" % (q(vR + 4 * t), vSrd + t), "r%d" % t)
        if "%x" % h in bar and barpos == 1:
            e("    s_barrier")
        for t in range(3):
            wait_lg("r%d" % t)
            e("    buffer_store_dwordx4 %s, v%d, s[28:31], s%d offen offset:%d %s" % (
                q(vR + 4 * t), vSt + 3 * (k % 4) + t if k >= NST else vLane16, 32 if di else sC + k, 1024 * t,
                st if h < wbfrom else ""))
            vm.append("o")

    if stamp:
        e("    s_waitcnt vmcnt(0)")
        e("    s_memtime s[46:47]")
        stp(7)
        e("    s_sub_u32 s50, s46, s44")
        e("    s_mov_b32 s51, 0x7000")
        e("    s_mov_b32 s66, 0x1000000")
        e("    s_mov_b32 s67, 0x20000")
        e("    s_lshl_b32 s3, s2, 2")
        e("    s_add_u32 s3, s3, s14")
        e("    s_lshl_b32 s3, s3, 6")
        for i in range(16):
            e("    v_mov_b32 v%d, s%d" % (32 + i, 48 + i))
        e("    v_mov_b32 v1, 0")
        e("    s_mov_b64 exec, 1")
        for i in range(4):
            e("    buffer_store_dwordx4 v[%d:%d], v1, s[64:67], s3 offen offset:%d" % (32 + 4 * i, 35 + 4 * i, 16 * i))
    e("L_end:")
    e("    s_endpgm")
    table_slow()

    out = HEADER + ("; STAMP build\n" if stamp else "")
    out += "; @launch grid=(256,1,1) block=(256,1,1) lds=%d\n" % LDS
    out += DOC
    out += '.amdgcn_target "amdgcn-amd-amdhsa--gfx950"\n.text\n.globl %s_kernel\n.p2align 8\n.type %s_kernel,@function\n' % (NAME, NAME)
    out += "\n".join(x.rstrip() for x in L) + "\n"
    out += """.section .rodata,"a"
.p2align 6
.amdhsa_kernel %s_kernel
  .amdhsa_next_free_vgpr %d
  .amdhsa_next_free_sgpr 96
  .amdhsa_accum_offset %d
  .amdhsa_group_segment_fixed_size 0
  .amdhsa_float_denorm_mode_32 3
  .amdhsa_kernarg_size 56
  .amdhsa_user_sgpr_count 2
  .amdhsa_user_sgpr_kernarg_segment_ptr 1
  .amdhsa_system_sgpr_workgroup_id_x 1
.end_amdhsa_kernel
""" % (NAME, NV + 144, NV)
    return out


if __name__ == "__main__":
    import inspect
    ap = argparse.ArgumentParser()
    ap.add_argument("-o", default="cdna_kernels/%s.s" % NAME)
    for k, p in inspect.signature(gen).parameters.items():
        if isinstance(p.default, bool):
            ap.add_argument("--" + k, action="store_true")
        else:
            ap.add_argument("--" + k, type=type(p.default), default=p.default)
    a = vars(ap.parse_args())
    o = a.pop("o")
    open(o, "w").write(gen(**a))
```

```python
import argparse

NAME = "standalone__detection_seg_fpn_lateral__vision"
HEADER = open("cdna_kernels/%s.s.ref" % NAME).read().split("; Override launch")[0]
C_BYTES, P_BYTES, W_BYTES = 50331648, 12582912, 18432

DOC = """;
;
; (2 bits per vote: 01 / 10 vote, 11 abstain). A table word is used only when all its votes are set, and a complete
"""


def gen(ld="nt", st="sc1", pat="wddwwdwwddwwdww", pts="10,13,13,13,16,16,23", taper="4444433333222111",
        rot=5, bar="48c", stpol="bbb", rdpos=4, tries=32, ew0=2, spread=3, cfirst=1, wfpre=0, barpos=0, fill="0,0,999", tld="sc1",
        stamp=False, dbgout=False, force=0, dups=""):
    L = []
    e = L.append
    pts = [int(x) for x in pts.split(",")]
    NST, SLOTS, TSTR = 2, 8, 48
    M = 0x5555

    NS = 5
    PO = NS * 3072
    SO = PO + 4 * 1536
    WAVE = SO + 3072
    XB = 4 * WAVE
    WB = XB + W_BYTES
    LDS = WB + 2 * W_BYTES

    aWf, aW2 = 0, 72
    vLane16, vSw1, vSw2, vBrd, vPrd, vSwr, vHi32, vSrd = 1, 2, 3, 4, 5, 6, 7, 8
    vWt, vWl, vXw, vXr, vT, vU, vWm, vJ, vG, vA, vD = 11, 12, 13, 14, 15, 16, 17, 18, 19, 20, 21
    vB, vP, vQ, vQx, vAcc, vO, vR = 24, 36, 48, 72, 96, 120, 132
    vWlF, vW2t, vWa, vWo = 132, 48, 96, 168
    vE0, vE1, vSt, vL1, vL2, vPa = 186, 191, 196, 208, 209, 210
    NV = 220
    sC, sP = 76, 84

    vm, lg = [], []

    def q(r, f="v"):
        return "%s[%d:%d]" % (f, r, r + 3)

    def c(text, note):
        e("    %-52s ; %s" % (text, note))

    def count_after(lst, tag):
        idx = [i for i, t in enumerate(lst) if t == tag]
        return None if not idx else len(lst) - 1 - idx[-1]

    def wait_vm(tag):
        n = count_after(vm, tag)
        if n is not None:
            assert n < 63
            e("    s_waitcnt vmcnt(%d)" % n)
            del vm[:len(vm) - n]

    def wait_lg(*tags):
        ns = [n for n in (count_after(lg, t) for t in tags) if n is not None]
        if ns:
            n = min(min(ns), 14)
            e("    s_waitcnt lgkmcnt(%d)" % n)
            del lg[:len(lg) - n]

    def ds(text, tag):
        e("    " + text)
        lg.append(tag)

    def stp(i):
        if stamp:
            e("    s_memrealtime s[%d:%d]" % (48 + 2 * i, 49 + 2 * i))
            e("    s_waitcnt lgkmcnt(0)")
            del lg[:]

    def row_of(k, dst):
        if k == 0:
            e("    s_mul_i32 %s, s41, 49152" % dst)
            return
        e("    s_add_u32 s3, s41, %d" % ((rot * k) & 31))
        e("    s_and_b32 s3, s3, 31")
        e("    s_add_u32 s3, s3, %d" % (32 * k))
        e("    s_mul_i32 %s, s3, 49152" % dst)

    def offsets(k, col):
        row_of(k, "s37")
        e("    s_add_u32 s%d, s37, %s" % (sP + k, col))
        e("    s_add_u32 s3, s37, s%d" % (sP + k))
        e("    s_lshl_b32 s%d, s3, 1" % (sC + k))

    e("%s_kernel:" % NAME)
    e("    s_cmp_ge_u32 s2, 256")
    e("    s_cbranch_scc1 L_end")
    if stamp:
        e("    s_memrealtime s[48:49]")
        e("    s_memtime s[44:45]")
        e("    s_load_dwordx2 s[64:65], s[0:1], 48")
    c("s_load_dwordx4 s[8:11], s[0:1], 16", "w_lat, w_out")
    c("s_load_dwordx2 s[20:21], s[0:1], 8", "p")
    c("s_load_dwordx2 s[16:17], s[0:1], 0", "c")
    c("s_load_dwordx2 s[28:29], s[0:1], 32", "out")
    c("s_load_dwordx2 s[92:93], s[0:1], 40", "vote table")
    c("s_memtime s[12:13]", "seed: picks the cache lines the probe races")
    e("    v_readfirstlane_b32 s14, v0")
    e("    v_and_b32 v0, 63, v0")
    e("    v_lshlrev_b32 v%d, 4, v0" % vLane16)
    c("s_lshr_b32 s14, s14, 6", "wave")
    c("s_and_b32 s71, s2, 7", "column class / vote slot")
    e("    s_lshl_b32 s15, s14, 3")
    e("    s_add_u32 s15, s15, s71")
    c("s_mul_i32 s15, s15, 1536", "column offset of the two fixed slices, in p bytes")
    c("s_lshr_b32 s41, s2, 3", "row group")
    c("s_mul_i32 s33, s14, %d" % WAVE, "wave LDS base")
    e("    s_and_b32 s74, s14, 1")
    e("    s_mul_i32 s34, s74, 9216")
    e("    s_mul_i32 s35, s14, 9216")
    e("    s_add_u32 s35, s35, %d" % WB)
    offsets(0, "s15")
    offsets(1, "s15")
    for r, v in ((18, C_BYTES), (22, P_BYTES), (26, W_BYTES), (30, C_BYTES), (94, 5 * TSTR + 4)):
        e("    s_mov_b32 s%d, %d" % (r, v))
        e("    s_mov_b32 s%d, 0x20000" % (r + 1))
    e("    s_mov_b32 s75, 0")
    e("    v_xor_b32 v%d, 32, v%d" % (vSw2, vLane16))
    e("    v_and_b32 v%d, 32, v0" % vHi32)
    e("    v_xor_b32 v%d, v%d, v%d" % (vSw1, vHi32, vLane16))
    e("    s_getreg_b32 s69, hwreg(HW_REG_XCC_ID, 0, 3)")
    e("    s_lshr_b32 s3, s71, 1")
    e("    s_xor_b32 s72, s3, s71")
    c("s_and_b32 s72, s72, 1", "phase tested by this slot")
    e("    s_lshr_b32 s37, s69, 2")
    e("    s_xor_b32 s3, s3, s37")
    e("    s_and_b32 s3, s3, 1")
    c("s_lshl_b32 s3, s3, 13", "address bit 13 that is near if that phase holds")
    e("    s_and_b32 s37, s71, 3")
    e("    s_lshl_b32 s68, s41, 2")
    e("    s_or_b32 s68, s68, s37")
    e("    s_cmp_eq_u32 s41, 1")
    e("    s_cselect_b32 s37, 2, 0")
    e("    s_or_b32 s68, s68, s37")
    e("    s_lshl_b32 s68, s68, 21")
    c("s_or_b32 s68, s68, s3", "probed page of segment s41")
    e("    s_mov_b32 m0, s35")
    e("    s_mov_b32 s36, s34")
    e("    s_sub_u32 s3, s41, 1")
    e("    s_cmp_lt_u32 s3, 5")
    e("    s_cbranch_scc1 L_prober")
    e("    s_cmp_lt_u32 s14, 2")
    e("    s_waitcnt lgkmcnt(0)")
    e("    s_cselect_b64 s[24:25], s[8:9], s[10:11]")

    def op_w(t):
        g0 = (t // 4) * 4096
        return ("w", "w%d" % g0, ["    s_add_u32 m0, s35, %d" % g0, "    s_add_u32 s36, s34, %d" % g0],
                ["    buffer_load_dwordx4 v%d, s[24:27], s36 offen offset:%d lds" % (vLane16, 1024 * (t % 4))])

    def ops_p(k):
        if k >= NST:
            pa, pb = vPa + 2 * (k & 1), vPa + 2 * (k & 1) + 1
        else:
            pa = pb = vSw2 if k & 1 else vLane16
        pre_ = ["    s_add_u32 m0, s33, %d" % (PO + (k % 4) * 1536), "    s_nop 0"]
        return [["p%d" % k, pre_, ["    buffer_load_dwordx4 v%d, s[20:23], s%d offen %s lds" % (pa, sP + k, ld)]],
                ["p%d" % k, pre_, ["    s_mov_b32 exec_hi, 0",
                                   "    buffer_load_dwordx4 v%d, s[20:23], s%d offen offset:1024 %s lds" % (pb, sP + k, ld),
                                   "    s_mov_b32 exec_hi, -1"]]]

    def ops_c(h):
        k, di = h >> 1, h & 1
        cv = (vSt + 3 * (k % 4), vL1, vL2) if k >= NST else (vLane16, vSw1, vSw2)
        pre_ = ["    s_add_u32 m0, s33, %d" % ((h % NS) * 3072),
                "    s_nop 0" if di == 0 else "    s_add_u32 s43, s%d, 98304" % (sC + k)]
        return [["c%d" % h, pre_, ["    buffer_load_dwordx4 v%d, s[16:19], s%d offen offset:%d %s lds" % (
            v, 43 if di else sC + k, 1024 * t, ld)]] for t, v in enumerate(cv)]

    per = [ops_c(h) for h in range(16)]
    for h in range(0, 16, 4):
        pp = ops_p(h >> 1) + ops_p((h >> 1) + 1)
        if h > 2 * NST:
            for n in range(spread):
                per[h - spread + n].append(pp.pop(0))
        per[h] = per[h] + pp if (cfirst and h == 2 * NST) else pp + per[h]
    data = [("h%d" % h,) + tuple(o) for h in range(16) for o in per[h]]
    first_op = [next(i for i, o in enumerate(data) if o[0] == "h%d" % h) for h in range(16)] + [len(data)]
    W = [op_w(t) for t in range(9)]
    m0key = ["w0"]
    nd = [0]
    ready = set()

    def emit(ops):
        for tag, kk, pre_, ins in ops:
            if kk != m0key[0]:
                for x in pre_:
                    e(x)
            m0key[0] = kk
            for x in ins:
                e(x)
            vm.append(tag)

    def lane_offsets(kind, k):
        e("    s_bitcmp1_b32 s38, %d" % k)
        e("    s_cselect_b64 vcc, -1, 0")
        if kind == "c":
            st_ = vSt + 3 * (k % 4)
            for t in range(3):
                e("    v_cndmask_b32 v%d, v%d, v%d, vcc" % (st_ + t, vE0 + t, vE1 + t))
            e("    v_xor_b32 v%d, v%d, v%d" % (vL1, vHi32, st_ + 1))
            e("    v_xor_b32 v%d, 32, v%d" % (vL2, st_ + 2))
        else:
            for t in range(2):
                r = vPa + 2 * (k & 1) + t
                e("    v_cndmask_b32 v%d, v%d, v%d, vcc" % (r, vE0 + 3 + t, vE1 + 3 + t))
                if k & 1:
                    e("    v_xor_b32 v%d, 32, v%d" % (r, r))

    def issue_one():
        key = data[nd[0]][1]
        k = int(key[1:]) if key[0] == "p" else int(key[1:]) >> 1
        if k >= NST:
            if "tab" not in ready:
                ready.add("tab")
                table_use()
            if k >= NST + 2 and k not in ready:
                ready.add(k)
                offsets(k, "s12")
            if (key[0], k) not in ready:
                ready.add((key[0], k))
                lane_offsets(key[0], k)
        emit([data[nd[0]]])
        nd[0] += 1

    def issue_to(n):
        while nd[0] < n:
            issue_one()

    def table_load():
        c("buffer_load_dword v%d, v%d, s[92:95], 0 offen %s" % (vD, vA, tld), "lane 0: die map, lane k: segment of item k")
        vm.append("tab")

    def table_use():
        wait_vm("tab")
        e("L_tab:")
        e("    v_lshrrev_b32 v%d, 1, v%d" % (vT, vD))
        e("    v_readfirstlane_b32 s37, v%d" % vD)
        e("    v_or_b32 v%d, v%d, v%d" % (vU, vT, vD))
        e("    v_and_b32 v%d, s68, v%d" % (vJ, vD))
        e("    v_and_b32 v%d, s68, v%d" % (vU, vU))
        e("    v_and_b32 v%d, s68, v%d" % (vG, vT))
        e("    v_cmp_ne_u32 s[4:5], s68, v%d" % vU)
        e("    v_bcnt_u32_b32 v%d, v%d, v%d" % (vJ, vJ, vJ + 4))
        e("    v_bcnt_u32_b32 v%d, v%d, 0" % (vG, vG))
        e("    s_bitcmp1_b32 s37, s71")
        c("v_cmp_ge_u32 vcc, v%d, v%d" % (vG, vJ), "majority phase; a tie alternates by wave")
        e("    s_cselect_b32 s38, s70, s72")
        e("    s_and_b32 s3, s4, 0xfd")
        e("    s_cbranch_scc1 L_tab_slow")
        c("s_xor_b32 s38, s38, vcc_lo", "bit k: half taken by this wave in item k")
        if dbgout:
            e("    s_lshl_b32 s58, s69, 8")
            e("    s_and_b32 s3, vcc_lo, 0xfc")
            e("    s_lshr_b32 s3, s3, 2")
            e("    s_or_b32 s58, s58, s3")
            e("    s_mov_b32 s59, 0")

    def table_slow():
        e("L_tab_slow:")
        e("    s_add_u32 s69, s69, 1")
        e("    s_cmp_le_u32 s69, %d" % tries)
        e("    s_cbranch_scc1 L_tab_reload")
        e("    v_xor_b32 v%d, s68, v%d" % (vU, vU))
        e("    v_lshl_add_u32 v%d, v%d, 1, v%d" % (vU, vU, vU))
        e("    v_or_b32 v%d, v%d, v%d" % (vJ, vU, vD))
        e("    v_mov_b32 v%d, v%d" % (vG, vD))
        e("    s_mov_b32 exec_lo, s3")
        e("    s_mov_b32 exec_hi, 0")
        c("buffer_atomic_cmpswap v[%d:%d], v%d, s[92:95], 0 offen sc1" % (vJ, vG, vA), "close missing votes")
        e("    s_mov_b64 exec, -1")
        e("    s_waitcnt vmcnt(0)")
        e("L_tab_reload:")
        e("    buffer_load_dword v%d, v%d, s[92:95], 0 offen sc0 sc1" % (vD, vA))
        e("    s_waitcnt vmcnt(0)")
        e("    s_branch L_tab")

    def prober_path():
        e("L_prober:")
        e("    s_mov_b32 s75, 1")
        e("    s_cmp_lt_u32 s14, 2")
        e("    s_waitcnt lgkmcnt(0)")
        e("    s_cselect_b64 s[24:25], s[8:9], s[10:11]")
        e("    s_cmp_lg_u32 s14, 0")
        e("    s_cbranch_scc1 L_pw")
        e("    s_mul_i32 s37, s12, 0x9e3779b1")
        e("    s_lshr_b32 s37, s37, 11")
        e("    s_and_b32 s37, s37, 0x1fdf80")
        e("    s_or_b32 s68, s68, s37")
        e("    s_mov_b64 exec, 1")
        e("    s_xor_b32 s37, s68, 8192")
        e("    buffer_load_dword v%d, v0, s[16:19], s68 offen nt" % vD)
        e("    buffer_load_dword v%d, v0, s[16:19], s37 offen nt" % vD)
        e("    s_mov_b64 exec, -1")
        e("L_pw:")
        e("    s_barrier")
        m0key[0] = "w0"
        emit(W)
        e("    s_cmp_lg_u32 s14, 0")
        e("    s_cbranch_scc1 L_pd")
        e("    s_sub_u32 s69, s69, s2")
        e("    s_and_b32 s69, s69, 7")
        e("    s_lshl_b32 s69, s69, 1")
        e("    s_lshr_b32 s69, 0x55aa55, s69")
        c("s_or_b32 s69, s69, 0xff00", "die of column classes 0..3 under this placement")
        e("    s_and_b32 s69, s69, 0xffff")
        e("    s_mul_i32 s70, s41, %d" % TSTR)
        e("    s_lshl_b32 s37, s71, 1")
        e("    s_add_u32 s72, s72, 1")
        e("    v_mov_b32 v%d, 0" % vA)
        e("    v_mov_b32 v%d, s69" % vB)
        e("    v_writelane_b32 v%d, s70, 0" % vA)
        e("    s_waitcnt vmcnt(10)")
        c("s_getreg_b32 s3, hwreg(HW_REG_IB_STS, 0, 4)", "vm_cnt: second load still in flight?")
        e("    s_cmp_eq_u32 s3, 10")
        e("    s_cselect_b32 s3, s72, 3")
        e("    s_lshl_b32 s3, s3, s37")
        if force == 1:
            e("    s_mov_b32 s3, 0")
        if force == 2:
            e("    s_bitcmp1_b32 s12, 4")
            e("    s_cselect_b32 s3, 0, s3")
        if force in (3, 5):
            e("    s_bfe_u32 s3, s12, 0x10005")
            e("    s_add_u32 s3, s3, 1")
            e("    s_lshl_b32 s3, s3, s37")
        if force == 3:
            e("    s_bfe_u32 s36, s12, 0x50004")
            e("L_late:")
            e("    s_sleep 6")
            e("    s_sub_u32 s36, s36, 1")
            e("    s_cbranch_scc0 L_late")
        e("    s_cmp_eq_u32 s2, %d" % (SLOTS if force != 4 else 999))
        e("    v_writelane_b32 v%d, s3, 0" % vB)
        e("    s_cselect_b64 exec, 3, 1")
        e("    buffer_atomic_or v%d, v%d, s[92:95], 0 offen sc1" % (vB, vA))
        e("    s_mov_b32 s75, 2")
        e("    s_mov_b64 exec, -1")
        e("L_pd:")
        e("    s_barrier")
        emit(data[:pts[0]])

    wi = 0
    for ch in pat:
        if ch == "w":
            emit([W[wi]]); wi += 1
        else:
            issue_one()
    assert wi == 9 and nd[0] <= pts[0] <= first_op[2 * NST]
    issue_to(pts[0])
    e("    s_branch L_started")
    keep = list(vm)
    prober_path()
    vm[:] = keep
    e("L_started:")
    m0key[0] = None
    wtail = count_after(vm, "w")
    vm[:] = [t for t in vm if t != "w"]

    e("    v_and_b32 v%d, 15, v0" % vJ)
    e("    v_lshrrev_b32 v%d, 4, v0" % vG)
    e("    v_lshrrev_b32 v%d, 2, v%d" % (vT, vJ))
    e("    v_and_b32 v%d, 3, v%d" % (vU, vJ))
    e("    v_lshl_add_u32 v%d, v%d, 3, v%d" % (vWt, vG, vT))
    e("    v_mul_u32_u24 v%d, 192, v%d" % (vWt, vWt))
    e("    v_lshl_add_u32 v%d, v%d, 4, v%d" % (vWt, vU, vWt))
    c("v_add_u32 v%d, %d, v%d" % (vWt, WB + W_BYTES, vWt), "w_out transpose reads")
    e("    s_lshr_b32 s73, s14, 1")
    e("    s_lshl_b32 s3, s73, 3")
    e("    v_add_u32 v%d, s3, v%d" % (vWm, vWt))
    e("    s_mul_i32 s3, s74, 768")
    e("    s_add_u32 s3, s3, %d" % WB)
    e("    v_lshl_add_u32 v%d, v%d, 3, v%d" % (vWl, vT, vU))
    e("    v_mul_u32_u24 v%d, 192, v%d" % (vWl, vWl))
    e("    v_lshl_add_u32 v%d, v%d, 4, v%d" % (vWl, vG, vWl))
    c("v_add_u32 v%d, s3, v%d" % (vWl, vWl), "w_lat row reads")
    c("v_add_u32 v%d, %d, v%d" % (vXr, XB, vLane16), "Wf fragment exchange")
    e("    s_mul_i32 s3, s73, 3072")
    e("    s_lshl_b32 s37, s74, 3")
    e("    s_add_u32 s3, s3, s37")
    e("    v_add_u32 v%d, s3, v%d" % (vXw, vXr))
    mark = len(L)
    e("    v_mul_u32_u24 v%d, %d, v0" % (vT, rot))
    e("    v_add_u32 v%d, s41, v%d" % (vT, vT))
    e("    v_and_b32 v%d, 31, v%d" % (vT, vT))
    e("    v_lshl_add_u32 v%d, v0, 5, v%d" % (vT, vT))
    e("    v_mul_u32_u24 v%d, 6, v%d" % (vT, vT))
    e("    v_add_u32 v%d, 3, v%d" % (vT, vT))
    e("    v_and_b32 v%d, 64, v%d" % (vU, vT))
    e("    v_lshrrev_b32 v%d, 8, v%d" % (vT, vT))
    e("    v_cmp_ne_u32 vcc, 0, v%d" % vU)
    c("v_mul_u32_u24 v%d, %d, v%d" % (vA, TSTR, vT), "table word of item k in lane k")
    e("    s_xor_b32 s3, s74, 1")
    e("    v_mov_b32 v%d, s3" % (vJ + 4))
    e("    s_bfe_i32 s3, s2, 0x10002")
    e("    s_xor_b32 s72, s3, vcc_lo")
    e("    s_not_b32 s70, s72")
    e("    s_and_b32 s71, s2, 3")
    e("    s_lshl_b32 s71, s71, 1")
    e("    s_add_u32 s71, s71, 1")
    e("    s_mov_b32 s68, 0x%x" % M)
    e("    s_mov_b32 s69, 0")
    e("    v_lshrrev_b32 v%d, 2, v%d" % (vT, vJ))
    e("    v_mul_u32_u24 v%d, 192, v%d" % (vSwr, vJ))
    e("    v_and_b32 v%d, 2, v%d" % (vU, vT))
    e("    v_xor_b32 v%d, v%d, v%d" % (vU, vU, vG))
    e("    v_lshl_add_u32 v%d, v%d, 4, v%d" % (vBrd, vU, vSwr))
    c("v_add_u32 v%d, s33, v%d" % (vBrd, vBrd), "c fragments: unit 12 j + 4 s + (g ^ 2 (j >> 3))")
    e("    v_lshrrev_b32 v%d, 1, v%d" % (vT, vJ))
    e("    v_and_b32 v%d, 6, v%d" % (vPrd, vT))
    e("    v_and_or_b32 v%d, v%d, 1, v%d" % (vPrd, vJ, vPrd))
    e("    v_and_b32 v%d, 2, v%d" % (vU, vJ))
    e("    v_lshl_add_u32 v%d, v%d, 2, v%d" % (vPrd, vU, vPrd))
    e("    v_mul_u32_u24 v%d, 192, v%d" % (vPrd, vPrd))
    e("    v_xor_b32 v%d, v%d, v%d" % (vU, vU, vG))
    e("    v_lshl_add_u32 v%d, v%d, 4, v%d" % (vPrd, vU, vPrd))
    c("v_add_u32 v%d, s33, v%d" % (vPrd, vPrd), "p fragments: item (j >> 1) & 1, pixel 2 (j >> 2) + (j & 1)")
    e("    s_add_u32 s73, s33, %d" % SO)
    e("    v_and_b32 v%d, 3, v%d" % (vT, vT))
    e("    v_xor_b32 v%d, v%d, v%d" % (vT, vT, vG))
    e("    v_lshl_add_u32 v%d, v%d, 4, v%d" % (vSwr, vT, vSwr))
    c("v_add_u32 v%d, s73, v%d" % (vSwr, vSwr), "staging: unit 12 j + 4 s + (g ^ ((j >> 1) & 3))")
    for t in range(3):
        r = vSrd + t
        e("    v_add_u32 v%d, %d, v0" % (r, 64 * t))
        e("    v_mul_u32_u24 v%d, 2731, v%d" % (vU, r))
        e("    v_bfe_u32 v%d, v%d, 16, 2" % (vU, vU))
        e("    v_xor_b32 v%d, v%d, v%d" % (r, r, vU))
        e("    v_lshl_add_u32 v%d, v%d, 4, s73" % (r, r))
    px0 = lambda x: x + (44 if x >= 42 else 0) + (42 if x >= 84 else 0)
    GROUP = [0, 2, 9, 10, 1, 3, 5, 15, 4, 8, 11, 12, 6, 7, 13, 14]
    lo_tab = sum((px0(16 * n) // 2) << (8 * n) for n in range(8))
    hi_tab = sum(((px0(16 * n + 15) - 15) // 2) << (8 * n) for n in range(8))
    thr_tab = sum({2: 5, 5: 2}.get(n, 8) << (4 * n) for n in range(8))
    grp_tab = sum(g_ << (4 * n) for n, g_ in enumerate(GROUP))
    e("    s_and_b32 s13, s2, 3")
    e("    s_lshl_b32 s13, s13, 2")
    e("    s_add_u32 s13, s13, s14")
    e("    s_lshl_b32 s13, s13, 2")
    e("    s_mov_b32 s4, 0x%x" % (grp_tab & 0xffffffff))
    e("    s_mov_b32 s5, 0x%x" % (grp_tab >> 32))
    c("s_lshr_b64 s[4:5], s[4:5], s13", "pixel group of this wave")
    e("    s_bfe_u32 s12, s4, 0x10003")
    c("s_mul_i32 s12, s12, 24576", "half-row offset in p bytes")
    e("    s_and_b32 s13, s4, 7")
    e("    s_lshl_b32 s3, s13, 2")
    e("    s_lshr_b32 s10, 0x%x, s3" % thr_tab)
    e("    s_and_b32 s10, s10, 15")
    c("s_mul_i32 s10, s10, 12", "split point in p units; twice that in c units")
    e("    s_lshl_b32 s13, s13, 3")
    for tab, r in ((lo_tab, 6), (hi_tab, 8)):
        e("    s_mov_b32 s4, 0x%x" % (tab & 0xffffffff))
        e("    s_mov_b32 s5, 0x%x" % (tab >> 32))
        e("    s_lshr_b64 s[4:5], s[4:5], s13")
        e("    s_and_b32 s4, s4, 0xff")
        e("    s_xor_b32 s5, s4, 64")
        e("    s_mul_i32 s%d, s4, 192" % r)
        e("    s_mul_i32 s%d, s5, 192" % (r + 1))
    for isp in (1, 0):
        for n_, r in enumerate((vT, vU, vL1, vL2)):
            e("    v_lshl_add_u32 v%d, s%d, %d, v%d" % (r, 6 + n_, 1 - isp, vLane16))
        if not isp:
            e("    s_lshl_b32 s10, s10, 1")
        for t in range(3 - isp):
            e("    v_add_u32 v%d, %d, v0" % (vD + 2, 64 * t))
            e("    v_cmp_le_u32 vcc, s10, v%d" % (vD + 2))
            e("    s_nop 1")
            e("    v_cndmask_b32 v%d, v%d, v%d, vcc" % (vE0 + 3 * isp + t, vT, vL1))
            e("    v_cndmask_b32 v%d, v%d, v%d, vcc" % (vE1 + 3 * isp + t, vU, vL2))
    offsets(NST, "s12")
    offsets(NST + 1, "s12")
    later = L[mark:]
    del L[mark:]
    fill = [int(x) for x in fill.split(",")]

    def setup(n):
        for _ in range(min(n, len(later))):
            e(later.pop(0))

    setup(fill[2])
    e("    s_waitcnt vmcnt(%d)" % (pts[0] + 1))
    e("    s_cmp_eq_u32 s75, 2")
    e("    s_cbranch_scc1 L_wok")
    e("    s_waitcnt vmcnt(%d)" % pts[0])
    e("    s_cmp_eq_u32 s75, 1")
    e("    s_cbranch_scc1 L_wok")
    e("    s_waitcnt vmcnt(%d)" % wtail)
    e("L_wok:")
    e("    s_barrier")
    stp(2)

    def tr_off(mt, s, hh):
        return (32 * s + 4 * hh) * 192 + 64 * (mt >> 1) + 8 * (mt & 1)

    def mine(i):
        for s in range(3):
            for hh in range(2):
                r = vW2t + (i * 3 + s) * 4 + 2 * hh
                ds("ds_read_b64_tr_b16 v[%d:%d], v%d offset:%d" % (r, r + 1, vWm, tr_off(2 * i, s, hh)), "m%d" % i)

    full = [(mt, s, hh) for mt in range(6) for s in range(3) for hh in range(2)]

    def w2_reads(n):
        for _ in range(min(n, len(full))):
            mt, s, hh = full.pop(0)
            r = aW2 + (mt * 3 + s) * 4 + 2 * hh
            ds("ds_read_b64_tr_b16 a[%d:%d], v%d offset:%d" % (r, r + 1, vWt, tr_off(mt, s, hh)), "w2")

    def wf_out(i, s):
        d = vWa + (i * 3 + s) * 4
        o = vWo + (i * 3 + s) * 2
        e("    v_cvt_pk_bf16_f32 v%d, v%d, v%d" % (o, d, d + 1))
        e("    v_cvt_pk_bf16_f32 v%d, v%d, v%d" % (o + 1, d + 2, d + 3))
        ds("ds_write_b64 v%d, v[%d:%d] offset:%d" % (vXw, o, o + 1, 1024 * (6 * i + s)), "x")

    def point(i):
        if rdpos == i:
            assert not any("table word" in x for x in later)
            table_load()
        issue_to(pts[i])

    mine(0)
    for s in range(3):
        for ks in range(3):
            ds("ds_read_b128 %s, v%d offset:%d" % (q(vWlF + (s * 3 + ks) * 4), vWl, 32 * s * 192 + 64 * ks), "l%d" % s)
    point(1)
    mine(1)
    mine(2)
    setup(fill[0])
    for i in range(3):
        for s in range(3):
            wait_lg("l%d" % s, "m%d" % i)
            for ks in range(3):
                d = vWa + (i * 3 + s) * 4
                e("    v_mfma_f32_16x16x32_bf16 %s, %s, %s, %s" % (
                    q(d), q(vWlF + (s * 3 + ks) * 4), q(vW2t + (i * 3 + ks) * 4), "0" if ks == 0 else q(d)))
                if i:
                    w2_reads(1)
                setup(fill[1] if i == 0 else 1)
            if i:
                wf_out(i - 1, s)
        point(2 + i)
    w2_reads(6)
    for s in range(3):
        wf_out(2, s)
    point(5)
    wait_lg("x")
    e("    s_barrier")
    stp(3)
    assert max(pts) <= first_op[NS]

    def wf_read(f):
        ds("ds_read_b128 %s, v%d offset:%d" % (q(aWf + 4 * f, "a"), vXr, 1024 * f), "wf")

    def frag_reads(h):
        if h in (0, 7, 15) and not (dbgout and h == 7):
            stp({0: 4, 7: 5, 15: 6}[h])
        if h & 3 == 0:
            for s in range(3):
                ds("ds_read_b128 %s, v%d offset:%d" % (q(vP + 4 * s), vPrd, PO + ((h >> 1) % 4) * 1536 + 64 * s), "p")
        for s in range(3):
            ds("ds_read_b128 %s, v%d offset:%d" % (q(vB + 4 * s), vBrd, (h % NS) * 3072 + 64 * s), "b")

    def mfma_block(h, ms, fill):
        for n, m in enumerate(ms, 1):
            e("    " + m)
            if dups:
                p_ = m.split(", ")
                lvl = int(dups[h])
                for _ in range(lvl // 2 + ((lvl & 1) if n & 1 else 0)):
                    e("    v_mfma_f32_16x16x32_bf16 v[216:219], %s, %s, 0" % (p_[1], p_[2]))
            for f in fill.get(n, []):
                f()

    def cvt_write(sp):
        o, a = vO + 4 * sp, vAcc + 8 * sp
        r = [lambda i=i: e("    v_cvt_pk_bf16_f32 v%d, v%d, v%d" % (o + i, a + 2 * i, a + 2 * i + 1)) for i in range(4)]
        r.append(lambda: ds("ds_write_b128 v%d, %s offset:%d" % (vSwr, q(o), 64 * sp), "s"))
        return r

    def widen(i, perm):
        e("    v_mov_b32_dpp v%d, v%d quad_perm:%s row_mask:0xf bank_mask:0xf" % (vQx + i, vQ + i, perm))

    order = [(mt, s) for mt in range(6) for s in range(3)]
    for h in range(16):
        k, di = h >> 1, h & 1
        e("; ---- step %d: item %d, row %d" % (h, k, di))
        if h == 0:
            w2_reads(99)
            for f in range(wfpre):
                wf_read(f)
            setup(999)
            wait_vm("h%d" % ew0)
            issue_to(pts[6])
        if "%x" % h in bar and barpos == 0:
            e("    s_barrier")
        wait_vm("h%d" % h)
        frag_reads(h)
        assert int(taper[h]) < NS
        issue_to(first_op[min(16, h + int(taper[h]) + 1)])
        if h & 3 == 0:
            wait_lg("w2", "p")
            fill = {}
            if h == 0:
                for f in range(wfpre, 18):
                    fill.setdefault(1 + (f - wfpre) * 2 // 3, []).append(lambda f=f: wf_read(f))
            for i in range(12):
                fill.setdefault(12 + i // 2, []).append(lambda i=i: widen(i, "[0,0,1,1]"))
            mfma_block(h, ["v_mfma_f32_16x16x32_bf16 %s, %s, %s, %s" % (
                q(vQ + 4 * mt), q(aW2 + (mt * 3 + s) * 4, "a"), q(vP + 4 * s), "0" if s == 0 else q(vQ + 4 * mt))
                for mt, s in order], fill)
            for i in range(12, 24):
                widen(i, "[0,0,1,1]")
        elif di == 0:
            for i in range(24):
                widen(i, "[2,2,3,3]")
        wait_lg("b", "wf")
        fill = {13 + n: [f] for n, f in enumerate(cvt_write(0))}
        mfma_block(h, ["v_mfma_f32_16x16x32_bf16 %s, %s, %s, %s" % (
            q(vAcc + 4 * mt), q(aWf + (mt * 3 + s) * 4, "a"), q(vB + 4 * s),
            q(vQx + 4 * mt) if s == 0 else q(vAcc + 4 * mt)) for mt, s in order], fill)
        for f in cvt_write(1):
            f()
        if di:
            e("    s_add_u32 s32, s%d, 98304" % (sC + k))
        else:
            e("    s_nop 0")
        for f in cvt_write(2):
            f()
        for t in range(3):
            ds("ds_read_b128 %s, v%d" % (q(vR + 4 * t), vSrd + t), "r%d" % t)
        if "%x" % h in bar and barpos == 1:
            e("    s_barrier")
        for t in range(3):
            wait_lg("r%d" % t)
            e("    buffer_store_dwordx4 %s, v%d, s[28:31], s%d offen offset:%d %s" % (
                q(vR + 4 * t), vSt + 3 * (k % 4) + t if k >= NST else vLane16, 32 if di else sC + k, 1024 * t,
                {"t": st, "b": "", "n": "nt"}[stpol.rjust(48, "t")[3 * h + t]]))
            vm.append("o")

    if stamp:
        e("    s_waitcnt vmcnt(0)")
        e("    s_memtime s[46:47]")
        stp(7)
        e("    s_sub_u32 s50, s46, s44")
        e("    s_mov_b32 s51, 0x7000")
        e("    s_mov_b32 s66, 0x1000000")
        e("    s_mov_b32 s67, 0x20000")
        e("    s_lshl_b32 s3, s2, 2")
        e("    s_add_u32 s3, s3, s14")
        e("    s_lshl_b32 s3, s3, 6")
        for i in range(16):
            e("    v_mov_b32 v%d, s%d" % (32 + i, 48 + i))
        e("    v_mov_b32 v1, 0")
        e("    s_mov_b64 exec, 1")
        for i in range(4):
            e("    buffer_store_dwordx4 v[%d:%d], v1, s[64:67], s3 offen offset:%d" % (32 + 4 * i, 35 + 4 * i, 16 * i))
    e("L_end:")
    e("    s_endpgm")
    table_slow()

    out = HEADER + ("; STAMP build\n" if stamp else "")
    out += "; @launch grid=(256,1,1) block=(256,1,1) lds=%d\n" % LDS
    out += DOC
    out += '.amdgcn_target "amdgcn-amd-amdhsa--gfx950"\n.text\n.globl %s_kernel\n.p2align 8\n.type %s_kernel,@function\n' % (NAME, NAME)
    out += "\n".join(x.rstrip() for x in L) + "\n"
    out += """.section .rodata,"a"
.p2align 6
.amdhsa_kernel %s_kernel
  .amdhsa_next_free_vgpr %d
  .amdhsa_next_free_sgpr 96
  .amdhsa_accum_offset %d
  .amdhsa_group_segment_fixed_size 0
  .amdhsa_float_denorm_mode_32 3
  .amdhsa_kernarg_size 56
  .amdhsa_user_sgpr_count 2
  .amdhsa_user_sgpr_kernarg_segment_ptr 1
  .amdhsa_system_sgpr_workgroup_id_x 1
.end_amdhsa_kernel
""" % (NAME, NV + 144, NV)
    return out


if __name__ == "__main__":
    import inspect
    ap = argparse.ArgumentParser()
    ap.add_argument("-o", default="cdna_kernels/%s.s" % NAME)
    for k, p in inspect.signature(gen).parameters.items():
        if isinstance(p.default, bool):
            ap.add_argument("--" + k, action="store_true")
        else:
            ap.add_argument("--" + k, type=type(p.default), default=p.default)
    a = vars(ap.parse_args())
    o = a.pop("o")
    open(o, "w").write(gen(**a))
```
